```python
import torch

def _softmax(x, axis=-1):
    return torch.softmax(x, dim=axis)
def _gelu(x):
    return torch.nn.functional.gelu(x, approximate="tanh")
def _silu(x):
    return torch.nn.functional.silu(x)
def _sigmoid(x):
    return torch.sigmoid(x)
def _layernorm(x, axis=-1, eps=1e-5):
    m = x.mean(dim=axis, keepdim=True)
    v = x.var(dim=axis, keepdim=True, unbiased=False)
    return (x - m) / torch.sqrt(v + eps)
def _scatter_add(tgt, idx, src, axis=0):
    return tgt.clone().index_add_(axis, idx, src)
def _segment_sum(src, seg, n):
    out = torch.zeros((n,) + src.shape[1:], dtype=src.dtype)
    return out.index_add_(0, seg, src)
def _pad(x, pw):
    flat = tuple(v for pair in reversed(pw) for v in pair)
    return torch.nn.functional.pad(x, flat)

kernel_name = 'parallel_sum__compressed_kv_cla__glu_gated_reglu__prompt'

def setup_inputs():

    _w = (lambda a: (lambda t: t.to(torch.bfloat16) if t.is_floating_point() else t)(torch.as_tensor(a)))
    def _A_setup():
        B, H, Sq, Sk, D, M = 1, 32, 2048, 2048, 128, 512
        Dc = 4 * D
        return {
            "x": _w((lambda *s: torch.randn(*s, dtype=torch.bfloat16) * 0.05)(B, Sq, M)),
            "c_kv": _w((lambda *s: torch.randn(*s, dtype=torch.bfloat16) * 0.4)(B, Sk, Dc)),
            "w_q": _w((lambda *s: torch.randn(*s, dtype=torch.bfloat16) * 1.6)(M, H, D) * (M ** -0.5)),
            "w_uk": _w((lambda *s: torch.randn(*s, dtype=torch.bfloat16) * 1.6)(Dc, H, D) * (Dc ** -0.5)),
            "w_uv": _w((lambda *s: torch.randn(*s, dtype=torch.bfloat16) * 0.4)(Dc, H, D) * (Dc ** -0.5)),
            "w_o": _w((lambda *s: torch.randn(*s, dtype=torch.bfloat16) * 0.4)(H, D, M) * ((H * D) ** -0.5)),
        }
    _A_in = _A_setup()

    def _B_setup():
        B, S, D, F = 1, 2048, 512, 1376
        return {
            "x": _w((lambda *s: torch.randn(*s, dtype=torch.bfloat16) * 0.05)(B, S, D)),
            "W_gate": _w((lambda *s: torch.randn(*s, dtype=torch.bfloat16) * 0.2)(D, F) * (2.0 / D) ** 0.5),
            "W_up": _w((lambda *s: torch.randn(*s, dtype=torch.bfloat16) * 0.2)(D, F) * (2.0 / D) ** 0.5),
            "W_down": _w((lambda *s: torch.randn(*s, dtype=torch.bfloat16) * 0.2)(F, D) * (1.0 / F) ** 0.5),
        }
    _B_in = _B_setup()

    return {
        "A_x": _A_in["x"],
        "A_c_kv": _A_in["c_kv"],
        "A_w_q": _A_in["w_q"],
        "A_w_uk": _A_in["w_uk"],
        "A_w_uv": _A_in["w_uv"],
        "A_w_o": _A_in["w_o"],
        "B_x": _B_in["x"],
        "B_W_gate": _B_in["W_gate"],
        "B_W_up": _B_in["W_up"],
        "B_W_down": _B_in["W_down"],
    }

def reference(A_x, A_c_kv, A_w_q, A_w_uk, A_w_uv, A_w_o, B_x, B_W_gate, B_W_up, B_W_down):
    def _A_ref(x, c_kv, w_q, w_uk, w_uv, w_o):
        B, Sq, M = x.shape[0], x.shape[1], x.shape[2]
        Sk = c_kv.shape[1]
        H, D = w_q.shape[1], w_q.shape[2]
        q = torch.einsum("bqm,mhd->bhqd", x, w_q)
        k = torch.einsum("bkc,chd->bhkd", c_kv, w_uk)
        v = torch.einsum("bkc,chd->bhkd", c_kv, w_uv)
        scores = torch.einsum("bhqd,bhkd->bhqk", q, k) * (D ** -0.5)
        off = Sk - Sq
        qi = torch.arange(Sq)[:, None]
        kj = torch.arange(Sk)[None, :]
        cmask = kj <= (qi + off)
        scores = torch.where(cmask[None, None], scores, -1e9)
        p = _softmax(scores, axis=-1)
        ctx = torch.einsum("bhqk,bhkd->bhqd", p, v)
        return torch.einsum("bhqd,hdm->bqm", ctx, w_o)

    def _B_ref(x, W_gate, W_up, W_down):
        gate = torch.einsum("bsd,df->bsf", x, W_gate)
        up = torch.einsum("bsd,df->bsf", x, W_up)
        gate = gate * (lambda x, dt: x.to(dt))(gate > 0, gate.dtype)
        h = gate * up
        return torch.einsum("bsf,fd->bsd", h, W_down)

    x = A_x
    xn = _layernorm(x, axis=-1)
    return x + _A_ref(xn, A_c_kv, A_w_q, A_w_uk, A_w_uv, A_w_o) + _B_ref(xn, B_W_gate, B_W_up, B_W_down)
```

```python
def v(i, n=1):
    return f"v{i}" if n == 1 else f"v[{i}:{i+n-1}]"
def a(i, n=1):
    return f"a{i}" if n == 1 else f"a[{i}:{i+n-1}]"
def s(i, n=1):
    return f"s{i}" if n == 1 else f"s[{i}:{i+n-1}]"

class K:
    def __init__(self, name):
        self.name = name
        self.L = []
    def __call__(self, line):
        self.L.append("    " + line)
    def label(self, l):
        self.L.append(l + ":")
    def c(self, t):
        self.L.append("    ; " + t)
    def srd(self, d, b, nbytes):
        self(f"s_mov_b32 s{d}, s{b}")
        self(f"s_and_b32 s{d+1}, s{b+1}, 0xffff")
        self(f"s_mov_b32 s{d+2}, {nbytes:#x}")
        self(f"s_mov_b32 s{d+3}, 0x00020000")
    def text(self, nvgpr, accum, nsgpr=102):
        n = self.name
        head = [f".globl {n}", ".p2align 8", f".type {n},@function", f"{n}:"]
        return "\n".join(head + self.L) + "\n"
    def desc(self, nfv, accum, nsgpr=102, wgy=False):
        n = self.name
        t = f""".p2align 6
.amdhsa_kernel {n}
  .amdhsa_next_free_vgpr {nfv}
  .amdhsa_next_free_sgpr {nsgpr}
  .amdhsa_accum_offset {accum}
  .amdhsa_group_segment_fixed_size 0
  .amdhsa_kernarg_size 104
  .amdhsa_user_sgpr_count 2
  .amdhsa_user_sgpr_kernarg_segment_ptr 1
  .amdhsa_system_sgpr_workgroup_id_x 1
"""
        if wgy:
            t += "  .amdhsa_system_sgpr_workgroup_id_y 1\n"
        t += ".end_amdhsa_kernel\n"
        return t

def build_file(header_lines, kernels):
    out = []
    out += header_lines
    out.append('.amdgcn_target "amdgcn-amd-amdhsa--gfx950"')
    out.append(".text")
    txt = "\n".join(out) + "\n"
    for k, nfv, accum, nsgpr in kernels:
        txt += k.text(nfv, accum, nsgpr)
    txt += '.section .rodata,"a"\n'
    for k, nfv, accum, nsgpr in kernels:
        txt += k.desc(nfv, accum, nsgpr)
    return txt

def merge(mfmas, streams):
    n = len(mfmas)
    gaps = [[] for _ in range(n)]
    for items, st, en in streams:
        m = len(items)
        if m == 0: continue
        span = en - st
        for j, it in enumerate(items):
            g = st + (j * span) // m
            assert 0 <= g < n, (g, n)
            if isinstance(it, (list, tuple)): gaps[g].extend(it)
            else: gaps[g].append(it)
    out = []
    for g in range(n):
        out.append(mfmas[g])
        out.extend(gaps[g])
    return out
```

```python
from ag import *
from layout import *
def bf16_round(k, dst, src, tmp):
    k(f"v_cvt_pk_bf16_f32 v{tmp}, v{src}, v{src}")
    k(f"v_lshlrev_b32 v{dst}, 16, v{tmp}")
def red8(k, r, t):
    k("s_nop 1")
    k(f"v_add_f32_dpp v{t}, v{r}, v{r} quad_perm:[1,0,3,2] row_mask:0xf bank_mask:0xf")
    k("s_nop 1")
    k(f"v_add_f32_dpp v{r}, v{t}, v{t} quad_perm:[2,3,0,1] row_mask:0xf bank_mask:0xf")
    k("s_nop 1")
    k(f"v_add_f32_dpp v{t}, v{r}, v{r} row_half_mirror row_mask:0xf bank_mask:0xf")
    k(f"v_mov_b32 v{r}, v{t}")

def ln_body(k, s_x, s_ws, s_task, vb, stmp, store_mods=""):
    L = vb
    vo_in, vo_out, t0, t1, sm, sq = vb+1, vb+2, vb+3, vb+4, vb+5, vb+6
    raw = vb + 8
    raw += raw % 2
    f = raw + 32
    k(f"v_and_b32 v{t0}, 7, v{L}")
    k(f"v_lshrrev_b32 v{t1}, 3, v{L}")
    k(f"v_lshlrev_b32 v{vo_in}, 10, v{t1}")
    k(f"v_lshl_add_u32 v{vo_in}, v{t0}, 4, v{vo_in}")
    k(f"s_lshl_b32 s{stmp}, s{s_task}, 13")
    for i in range(8):
        k(f"buffer_load_dwordx4 {v(raw+4*i,4)}, v{vo_in}, {s(s_x,4)}, s{stmp} offen offset:{i*128}")
    k(f"v_lshlrev_b32 v{vo_out}, 8, v{t0}")
    k(f"v_lshl_add_u32 v{vo_out}, v{t1}, 4, v{vo_out}")
    k(f"s_lshr_b32 s{stmp+1}, s{s_task}, 1")
    k(f"s_lshl_b32 s{stmp+1}, s{stmp+1}, 14")
    k(f"s_and_b32 s{stmp+2}, s{s_task}, 1")
    k(f"s_lshl_b32 s{stmp+2}, s{stmp+2}, 7")
    k(f"s_add_u32 s{stmp+1}, s{stmp+1}, s{stmp+2}")
    if XF_OFF: k(f"s_add_u32 s{stmp+1}, s{stmp+1}, {XF_OFF}")
    k(f"v_mov_b32 v{sm}, 0")
    k(f"v_mov_b32 v{sq}, 0")
    for i in range(8):
        k(f"s_waitcnt vmcnt({7-i})")
        for r in range(4):
            x = raw + 4*i + r
            k(f"v_lshlrev_b32 v{f+8*i+2*r}, 16, v{x}")
            k(f"v_and_b32 v{f+8*i+2*r+1}, 0xffff0000, v{x}")
        for r in range(0, 8, 2):
            k(f"v_add_f32 v{sm}, v{sm}, v{f+8*i+r}")
            k(f"v_add_f32 v{sq}, v{sq}, v{f+8*i+r+1}")
    k(f"v_add_f32 v{sm}, v{sm}, v{sq}")
    red8(k, sm, t0)
    k(f"v_mul_f32 v{sm}, {1.0/512!r}, v{sm}")
    k(f"v_mov_b32 v{sq}, 0")
    k(f"v_mov_b32 v{t1}, 0")
    for i in range(0, 64, 2):
        k(f"v_sub_f32 v{raw}, v{f+i}, v{sm}")
        k(f"v_sub_f32 v{raw+1}, v{f+i+1}, v{sm}")
        k(f"v_fmac_f32 v{sq}, v{raw}, v{raw}")
        k(f"v_fmac_f32 v{t1}, v{raw+1}, v{raw+1}")
    k(f"v_add_f32 v{sq}, v{sq}, v{t1}")
    red8(k, sq, t0)
    k(f"v_mul_f32 v{sq}, {1.0/512!r}, v{sq}")
    bf16_round(k, sq, sq, t0)
    k(f"v_add_f32 v{sq}, 0x3727c5ac, v{sq}")
    bf16_round(k, sq, sq, t0)
    k(f"v_sqrt_f32 v{sq}, v{sq}")
    k("s_nop 0")
    bf16_round(k, sq, sq, t0)
    k(f"v_rcp_f32 v{sq}, v{sq}")
    bf16_round(k, sm, sm, t0)
    for i in range(32):
        a0, a1 = f+2*i, f+2*i+1
        k(f"v_sub_f32 v{a0}, v{a0}, v{sm}")
        k(f"v_sub_f32 v{a1}, v{a1}, v{sm}")
        k(f"v_cvt_pk_bf16_f32 v{t0}, v{a0}, v{a1}")
        k(f"v_lshlrev_b32 v{a0}, 16, v{t0}")
        k(f"v_and_b32 v{a1}, 0xffff0000, v{t0}")
        k(f"v_mul_f32 v{a0}, v{a0}, v{sq}")
        k(f"v_mul_f32 v{a1}, v{a1}, v{sq}")
        k(f"v_cvt_pk_bf16_f32 v{raw+i}, v{a0}, v{a1}")
        if i % 4 == 3:
            ii = i // 4
            if ii % 2 == 0 and ii > 0:
                k(f"s_add_u32 s{stmp+1}, s{stmp+1}, 4096")
            k(f"buffer_store_dwordx4 {v(raw+4*ii,4)}, v{vo_out}, {s(s_ws,4)}, s{stmp+1} offen offset:{(ii%2)*2048}{store_mods}")

def gen_k0(name="ln"):
    k = K(name + "_kernel")
    k("s_cmp_ge_u32 s2, 256")
    k(f"s_cbranch_scc1 L_{name}_end")
    k("s_load_dwordx2 s[4:5], s[0:1], 0")
    k("s_load_dwordx2 s[6:7], s[0:1], 96")
    k("s_waitcnt lgkmcnt(0)")
    k.srd(8, 4, S*M*2)
    k.srd(12, 6, WS_USED)
    ln_body(k, 8, 12, 2, 0, 16)
    k.label(f"L_{name}_end")
    k("s_endpgm")
    return k, 112, 112, 32, f"; @launch kernel={name}_kernel grid=(256,1,1) block=(64,1,1) lds=0"
if __name__ == "__main__":
    import hz
    k = gen_k0()[0]
    hz.check(k.L, "k0")
```

```python
from ag import *
from layout import *
import struct
def f32hex(x): return "0x%08x" % struct.unpack("<I", struct.pack("<f", x))[0]

V_TR = 2
V_DMA = 6
V_ROWL, V_COLP = 10, 11
V_ST = 12
V_STH = 13
V_AOFF = 14
V_B = 32
V_ACC = 96
V_ACCG = 160
V_PK = 224
S_WS = 8
S_PF = 12
S_WQ, S_WG, S_WU = 16, 20, 24
S_A = 28
S_PITCH, S_PFBASE, S_PFIDX, S_N, S_NP2, S_P0, S_Q0 = 32, 33, 34, 35, 36, 37, 38
S_W = 39
S_LDSW = 40
S_SLOT = 41
S_CUR = 42
S_ST = 44
S_T = 48
S_SCALE = 56
S_RB = 57
S_OUTB = 58
S_C1, S_C2, S_C3 = 60, 61, 62
S_KOFF = 63
OOB = 0x7ff00000

def acc(nt, rt, base=V_ACC): return base + (nt * 4 + rt) * 4
def afrag(rt, ks): return (rt * 16 + ks) * 4

def desc_update(typ):
    L = []
    if typ == "kv":
        L += [f"s_add_u32 s{S_T}, s{S_Q0}, s{S_PFIDX}",
              f"s_lshl_b32 s{S_T}, s{S_T}, 7",
              f"s_add_u32 s{S_T}, s{S_T}, s{S_KOFF}",
              f"s_cmp_lt_u32 s{S_PFIDX}, s{S_N}",
              f"s_cselect_b32 s{S_PFBASE}, s{S_T}, {OOB:#x}"]
        return L
    L += [
        f"s_lshr_b32 s{S_T}, s{S_PFIDX}, 1",
        f"s_add_u32 s{S_T}, s{S_T}, s{S_P0}",
        f"s_lshl_b32 s{S_T}, s{S_T}, 7",
        f"s_bitcmp1_b32 s{S_PFIDX}, 0",
        f"s_cselect_b32 s{S_T+2}, s{S_WU}, s{S_WG}",
        f"s_cselect_b32 s{S_T+3}, s{S_WU+1}, s{S_WG+1}",
        f"s_sub_u32 s{S_T+1}, s{S_PFIDX}, s{S_NP2}",
        f"s_add_u32 s{S_T+1}, s{S_T+1}, s{S_Q0}",
        f"s_lshl_b32 s{S_T+1}, s{S_T+1}, 7",
        f"s_cmp_lt_u32 s{S_PFIDX}, s{S_NP2}",
        f"s_cselect_b32 s{S_T}, s{S_T}, s{S_T+1}",
        f"s_cselect_b32 s{S_PF}, s{S_T+2}, s{S_WQ}",
        f"s_cselect_b32 s{S_PF+1}, s{S_T+3}, s{S_WQ+1}",
        f"s_cselect_b32 s{S_PF+2}, s{S_WG+2}, s{S_WQ+2}",
        f"s_cselect_b32 s{S_PITCH}, s{S_KOFF}, {H*D*2}",
        f"s_lshl_b32 s{S_T+1}, s{S_W}, 6",
        f"s_mul_i32 s{S_T+1}, s{S_T+1}, s{S_PITCH}",
        f"s_add_u32 s{S_T}, s{S_T}, s{S_T+1}",
        f"s_cmp_lt_u32 s{S_PFIDX}, s{S_N}",
        f"s_cselect_b32 s{S_PFBASE}, s{S_T}, {OOB:#x}",
    ]
    L += pitch_consts()
    return L
def pitch_consts():
    return [
        f"s_lshl_b32 s{S_C1}, s{S_PITCH}, 4",
        f"s_lshl_b32 s{S_C2}, s{S_PITCH}, 2",
        f"s_add_u32 s{S_C3}, s{S_C1}, s{S_C2}",
        f"s_sub_u32 s{S_C1}, s{S_C1}, 1024",
        f"s_sub_u32 s{S_C2}, s{S_C2}, 2048",
        f"s_sub_u32 s{S_C3}, s{S_C3}, 3072",
        f"v_mad_u32_u24 v{V_DMA}, v{V_ROWL}, s{S_PITCH}, v{V_COLP}",
        f"v_add_u32 v{V_DMA+1}, s{S_C1}, v{V_DMA}",
        f"v_add_u32 v{V_DMA+2}, s{S_C2}, v{V_DMA}",
        f"v_add_u32 v{V_DMA+3}, s{S_C3}, v{V_DMA}",
    ]

def dma_group(khalf, kk, slot_sgpr_expr):
    rows = 256 * khalf + 32 * kk
    setup = [f"s_mul_i32 s{S_T+4}, s{S_PITCH}, {rows}" if rows else f"s_mov_b32 s{S_T+4}, 0",
             f"s_add_u32 s{S_T+4}, s{S_T+4}, s{S_PFBASE}",
             f"s_add_u32 m0, s{slot_sgpr_expr}, {khalf*32768 + kk*4096}"]
    items = []
    for i in range(4):
        d = f"buffer_load_dwordx4 v{V_DMA+i}, {s(S_PF,4)}, s{S_T+4} offen offset:{1024*i} lds"
        items.append(setup[:1] + setup[2:3] + setup[1:2] + [d] if i == 0 else [d])
    return items

def tr_reads(khalf, nt, buf):
    L = []
    for ks in range(8):
        for j in range(2):
            L.append(f"ds_read_b64_tr_b16 {v(V_B + buf*32 + ks*4 + j*2, 2)}, v{V_TR+nt} offset:{khalf*32768 + ks*4096 + j*2048}")
    return L

def mfma_block(typ, khalf, nt, accbase):
    L = []
    buf = nt % 2
    for rt in range(4):
        for ks in range(8):
            d = v(acc(nt, rt, accbase), 4)
            c = "0" if (khalf == 0 and ks == 0) else d
            w = v(V_B + buf*32 + ks*4, 4)
            t = a(afrag(rt, 8*khalf + ks), 4)
            if typ == "V": L.append(f"v_mfma_f32_16x16x32_bf16 {d}, {t}, {w}, {c}")
            else: L.append(f"v_mfma_f32_16x16x32_bf16 {d}, {w}, {t}, {c}")
    return L

def epi_pair(typ, t0, t1, g0, g1, pk, voff, sbase, imm):
    L = []
    srcs = [t0 + r for r in range(4)] + [t1 + r for r in range(4)]
    if typ == "Q":
        for r in srcs: L.append(f"v_mul_f32 v{r}, s{S_SCALE}, v{r}")
    if typ == "U":
        gs = [g0 + r for r in range(4)] + [g1 + r for r in range(4)]
        for r, g in zip(srcs, gs): L.append(f"v_mul_f32 v{r}, v{g}, v{r}")
    for i in range(4):
        L.append(f"v_cvt_pk_bf16_f32 v{pk+i}, v{srcs[2*i]}, v{srcs[2*i+1]}")
    L.append(f"buffer_store_dwordx4 {v(pk,4)}, v{voff}, {s(S_WS,4)}, s{sbase} offen offset:{imm}")
    return L

def chunk_body(k, typ, wgtype):
    accbase = V_ACCG if typ == "G" else V_ACC
    sb = []
    if typ in ("K", "V", "Q"):
        tstr = 8192 if typ == "Q" else 16384
        sb += [f"s_add_u32 s{S_T+5}, s{S_Q0}, s{S_CUR}"]
        if wgtype == "qgu": sb += [f"s_sub_u32 s{S_T+5}, s{S_T+5}, s{S_NP2}"]
        sb += [f"s_lshr_b32 s{S_T+6}, s{S_T+5}, 1",
               f"s_mul_i32 s{S_T+6}, s{S_T+6}, {64*tstr}",
               f"s_and_b32 s{S_T+5}, s{S_T+5}, 1",
               f"s_lshl_b32 s{S_T+5}, s{S_T+5}, 12",
               f"s_add_u32 s{S_T+6}, s{S_T+6}, s{S_T+5}",
               f"s_add_u32 s{S_ST}, s{S_T+6}, s{S_OUTB}",
               f"s_add_u32 s{S_ST+1}, s{S_ST}, {tstr}"]
    if typ == "U":
        sb += [f"s_lshr_b32 s{S_T+5}, s{S_CUR}, 1",
               f"s_add_u32 s{S_T+5}, s{S_T+5}, s{S_P0}",
               f"s_lshl_b32 s{S_T+5}, s{S_T+5}, 11",
               f"s_add_u32 s{S_ST}, s{S_T+5}, s{S_OUTB+1}"]
        for rt in range(1, 4):
            sb += [f"s_add_u32 s{S_ST+rt}, s{S_ST}, {rt*KS3*1024}"]
    def pair_epi(idx, pk):
        if typ in ("Q", "K", "U"):
            pi_, rt = idx // 4, idx % 4
            t0, t1 = acc(2*pi_, rt), acc(2*pi_+1, rt)
            g0, g1 = acc(2*pi_, rt, V_ACCG), acc(2*pi_+1, rt, V_ACCG)
            if typ == "U":
                return epi_pair(typ, t0, t1, g0, g1, pk, V_STH, S_ST + rt, pi_*1024)
            rto = 256 if typ == "Q" else 128
            return epi_pair(typ, t0, t1, 0, 0, pk, V_ST, S_ST + rt//2, pi_*2048 + (rt%2)*rto)
        if typ == "V":
            nt, rp = idx // 2, idx % 2
            return epi_pair(typ, acc(nt, 2*rp), acc(nt, 2*rp+1), 0, 0, pk, V_ST, S_ST + rp, (nt%2)*256 + (nt//2)*2048)
    for b in range(8):
        khalf, nt = b // 4, b % 4
        streams = []
        pre = []
        if nt == 3:
            pre += ["s_waitcnt vmcnt(16) lgkmcnt(0)", "s_barrier"]
        else:
            pre += ["s_waitcnt lgkmcnt(0)"]
        if b < 7:
            nb = b + 1
            rd = tr_reads(nb // 4, nb % 4, nb % 2)
        else:
            pre_t = [f"v_xor_b32 v{V_TR+i}, 0x10000, v{V_TR+i}" for i in range(4)]
            rd = [pre_t + [tr_reads(0, 0, 0)[0]]] + tr_reads(0, 0, 0)[1:]
        streams.append((rd, 0, 24))
        if b == 3:
            du = [f"s_add_u32 s{S_PFIDX}, s{S_PFIDX}, 1"] + desc_update(wgtype)
            streams.append((du, 0, 12))
        if b in (3, 4): g = dma_group(0, 0, S_SLOT); it = g[:2] if b == 3 else g[2:]
        if b in (5, 6): g = dma_group(0, 1, S_SLOT); it = g[:2] if b == 5 else g[2:]
        if b in (7, 0): g = dma_group(1, 0, S_SLOT); it = g[:2] if b == 7 else g[2:]
        if b in (1, 2): g = dma_group(1, 1, S_SLOT); it = g[:2] if b == 1 else g[2:]
        streams.append((it, 14, 30))
        if b == 2:
            streams.append(([f"s_xor_b32 s{S_SLOT}, s{S_SLOT}, 0x10000"], 31, 32))
        if b == 0: streams.append((sb, 0, 12))
        post = []
        if typ in ("Q", "K", "U"):
            if b == 6:
                e = []
                for idx in range(4): e += pair_epi(idx, V_PK + 4*(idx % 4))
                streams.append((e, 2, 32))
            if b == 7:
                for rt in range(3):
                    streams.append((pair_epi(4 + rt, V_PK + 4*rt), 8*(rt+1) + 3, 8*(rt+2)))
                post = ["s_nop 7"] + pair_epi(7, V_PK + 12)
        if typ == "V":
            if b >= 4:
                streams.append((pair_epi(2*nt, V_PK + 0), 20, 30))
            if b >= 5:
                streams.append((pair_epi(2*(nt-1)+1, V_PK + 4), 4, 14))
            if b == 7:
                post = ["s_nop 7"] + pair_epi(7, V_PK + 8)
        if typ == "G":
            if b >= 5:
                e = [f"v_max_f32 v{acc(nt-1, rt, V_ACCG)+r}, 0, v{acc(nt-1, rt, V_ACCG)+r}" for rt in range(4) for r in range(4)]
                streams.append((e, 4, 30))
            if b == 7:
                post = ["s_nop 7"] + [f"v_max_f32 v{acc(3, rt, V_ACCG)+r}, 0, v{acc(3, rt, V_ACCG)+r}" for rt in range(4) for r in range(4)]
        for l in pre: k(l)
        for l in merge(mfma_block(typ, khalf, nt, accbase), streams): k(l)
        for l in post: k(l)
    k(f"s_add_u32 s{S_CUR}, s{S_CUR}, 1")

def prologue_common(k, wgtype):
    pass

def gen_k1(name="proj"):
    k = K(name + "_kernel")
    E = f"L_{name}_end"
    k("s_cmp_ge_u32 s2, 256")
    k(f"s_cbranch_scc1 {E}")
    k("s_load_dwordx4 s[64:67], s[0:1], 8")
    k("s_load_dwordx4 s[68:71], s[0:1], 24")
    k("s_load_dwordx4 s[72:75], s[0:1], 56")
    k("s_load_dwordx2 s[76:77], s[0:1], 96")
    k("v_lshrrev_b32 v1, 6, v0")
    k("v_and_b32 v0, 63, v0")
    k(f"v_readfirstlane_b32 s{S_W}, v1")
    k("v_lshrrev_b32 v15, 5, v0")
    k("v_bfe_u32 v16, v0, 2, 3")
    k("v_and_b32 v17, 3, v0")
    k("v_lshlrev_b32 v18, 10, v15")
    k("v_lshl_add_u32 v18, v16, 7, v18")
    k("v_lshl_add_u32 v18, v17, 3, v18")
    k("v_lshrrev_b32 v19, 1, v16")
    k("v_lshl_add_u32 v18, v19, 5, v18")
    for nt in range(4):
        k(f"v_xor_b32 v{V_TR+nt}, {nt*32}, v18")
    k("v_lshrrev_b32 v15, 3, v0")
    k("v_and_b32 v16, 3, v15")
    k("v_lshrrev_b32 v17, 2, v15")
    k(f"v_lshl_add_u32 v{V_ROWL}, v17, 3, v16")
    k("v_and_b32 v16, 7, v0")
    k("v_and_b32 v17, 6, v15")
    k("v_xor_b32 v16, v16, v17")
    k(f"v_lshlrev_b32 v{V_COLP}, 4, v16")
    k("v_lshrrev_b32 v15, 4, v0")
    k("v_and_b32 v16, 15, v0")
    k(f"v_lshlrev_b32 v{V_STH}, 4, v0")
    k(f"v_lshlrev_b32 v{V_ST}, 9, v15")
    k(f"v_lshl_add_u32 v{V_ST}, v16, 4, v{V_ST}")
    k("v_and_b32 v17, 8, v16")
    k(f"v_lshl_add_u32 v20, v17, 4, v{V_ST}")
    k("v_lshlrev_b32 v21, 10, v16")
    k("v_lshl_add_u32 v21, v15, 4, v21")
    k("s_and_b32 s3, s2, 7")
    k("s_lshr_b32 s4, s2, 3")
    k("s_and_b32 s5, s3, 1")
    k("s_lshl_b32 s5, s5, 2")
    k("s_and_b32 s6, s4, 3")
    k(f"s_add_u32 s{S_RB}, s5, s6")
    k("s_bfe_u32 s5, s3, 0x10001")
    k("s_lshl_b32 s5, s5, 3")
    k("s_lshr_b32 s6, s4, 2")
    k("s_add_u32 s7, s5, s6")
    k(f"s_lshl_b32 s{S_LDSW}, s{S_W}, 13")
    k(f"s_mov_b32 s{S_CUR}, 0")
    k(f"s_mov_b32 s{S_SCALE}, {f32hex(QSCALE)}")
    k("s_waitcnt lgkmcnt(0)")
    k.srd(S_WS, 76, WS_USED)
    k("s_cmp_ge_u32 s3, 4")
    k(f"s_cbranch_scc1 L_{name}_qgu")
    k("s_cmp_ge_u32 s7, 8")
    k("s_cselect_b32 s78, s70, s68")
    k("s_cselect_b32 s79, s71, s69")
    k.srd(S_PF, 78, M*H*D*2)
    k.srd(S_A, 64, S*M*2)
    k("s_and_b32 s5, s7, 7")
    k(f"s_lshl_b32 s{S_Q0}, s5, 3")
    k(f"s_mov_b32 s{S_N}, 8")
    k(f"s_mov_b32 s{S_NP2}, 0")
    k(f"s_mov_b32 s{S_PITCH}, {H*D*2}")
    k(f"s_mul_i32 s{S_KOFF}, s{S_W}, {64*H*D*2}")
    for l in pitch_consts(): k(l)
    k(f"s_lshl_b32 s5, s{S_RB}, 3")
    k(f"s_lshl_b32 s6, s{S_W}, 1")
    k("s_add_u32 s5, s5, s6")
    k("s_lshl_b32 s5, s5, 14")
    k(f"s_add_u32 s{S_OUTB}, s5, {KV_OFF}")
    def start(wgtype):
        k(f"s_mov_b32 s{S_PFIDX}, 0")
        for l in desc_update(wgtype): k(l)
        k(f"s_mov_b32 s{S_SLOT}, s{S_LDSW}")
        for kh in range(2):
            for kk in range(2):
                for it in dma_group(kh, kk, S_SLOT):
                    for l in it: k(l)
        for rt in range(4):
            if wgtype == "kv":
                k(f"s_lshl_b32 s5, s{S_RB}, 18")
                k(f"s_lshl_b32 s6, s{S_W}, 16")
                k("s_add_u32 s5, s5, s6")
                k(f"s_add_u32 s5, s5, {rt*16384}")
                for ks in range(16):
                    k(f"buffer_load_dwordx4 {a(afrag(rt,ks),4)}, v21, {s(S_A,4)}, s5 offen offset:{ks*64}")
            else:
                for k4 in range(4):
                    k(f"s_lshl_b32 s5, s{S_RB}, 18")
                    k(f"s_lshl_b32 s6, s{S_W}, 16")
                    k("s_add_u32 s5, s5, s6")
                    k(f"s_add_u32 s5, s5, {XF_OFF + rt*16384 + k4*4096}")
                    for kq in range(4):
                        k(f"buffer_load_dwordx4 {a(afrag(rt,k4*4+kq),4)}, v{V_STH}, {s(S_WS,4)}, s5 offen offset:{kq*1024}")
            if rt == 1: k("s_waitcnt vmcnt(16)")
        k(f"s_mov_b32 s{S_PFIDX}, 1")
        for l in desc_update(wgtype): k(l)
        k(f"s_xor_b32 s{S_SLOT}, s{S_SLOT}, 0x10000")
        k("s_waitcnt vmcnt(40)")
        for kk in range(2):
            for it in dma_group(0, kk, S_SLOT):
                for l in it: k(l)
        for it in dma_group(1, 0, S_SLOT)[:2]:
            for l in it: k(l)
        k("s_waitcnt vmcnt(10)")
        k("s_barrier")
        for l in tr_reads(0, 0, 0): k(l)
    start("kv")
    k("s_cmp_ge_u32 s7, 8")
    k(f"s_cbranch_scc1 L_{name}_v")
    k(f"v_mov_b32 v{V_ST}, v20")
    k.label(f"L_{name}_kloop")
    chunk_body(k, "K", "kv")
    k(f"s_cmp_lt_u32 s{S_CUR}, s{S_N}")
    k(f"s_cbranch_scc1 L_{name}_kloop")
    k(f"s_branch {E}")
    k.label(f"L_{name}_v")
    k(f"s_add_u32 s{S_OUTB}, s{S_OUTB}, 8192")
    k.label(f"L_{name}_vloop")
    chunk_body(k, "V", "kv")
    k(f"s_cmp_lt_u32 s{S_CUR}, s{S_N}")
    k(f"s_cbranch_scc1 L_{name}_vloop")
    k(f"s_branch {E}")
    k.label(f"L_{name}_qgu")
    k.srd(S_WQ, 66, M*H*D*2)
    k.srd(S_WG, 72, M*F*2)
    k.srd(S_WU, 74, M*F*2)
    k.srd(S_PF, 66, M*H*D*2)
    k(f"s_mov_b32 s{S_KOFF}, {F*2}")
    k(f"s_mul_i32 s{S_P0}, s7, 3")
    k(f"s_sub_u32 s5, s7, 8")
    k(f"s_min_u32 s6, s5, 4")
    k(f"s_mul_i32 s4, s5, 6")
    k(f"s_add_u32 s4, s4, s6")
    k(f"s_add_u32 s4, s4, 12")
    k(f"s_cmp_lt_u32 s5, 4")
    k(f"s_cselect_b32 s6, 7, 6")
    k(f"s_cmp_lt_u32 s7, 8")
    k(f"s_cselect_b32 s{S_Q0}, s7, s4")
    k(f"s_cselect_b32 s{S_N}, 7, s6")
    k(f"s_cselect_b32 s{S_NP2}, 6, 0")
    k(f"s_cmp_eq_u32 s7, 7")
    k(f"s_cselect_b32 s{S_NP2}, 2, s{S_NP2}")
    k(f"s_lshl_b32 s5, s{S_RB}, 3")
    k(f"s_lshl_b32 s6, s{S_W}, 1")
    k("s_add_u32 s5, s5, s6")
    k("s_lshl_b32 s6, s5, 13")
    k(f"s_add_u32 s{S_OUTB}, s6, {QF_OFF}")
    k(f"s_mul_i32 s6, s5, {2*KS3*1024}")
    k(f"s_add_u32 s{S_OUTB+1}, s6, {AF_OFF + 128*1024}")
    start("qgu")
    k(f"s_cmp_ge_u32 s{S_CUR}, s{S_NP2}")
    k(f"s_cbranch_scc1 L_{name}_qloop")
    k.label(f"L_{name}_guloop")
    chunk_body(k, "G", "qgu")
    chunk_body(k, "U", "qgu")
    k(f"s_cmp_lt_u32 s{S_CUR}, s{S_NP2}")
    k(f"s_cbranch_scc1 L_{name}_guloop")
    k.label(f"L_{name}_qloop")
    chunk_body(k, "Q", "qgu")
    k(f"s_cmp_lt_u32 s{S_CUR}, s{S_N}")
    k(f"s_cbranch_scc1 L_{name}_qloop")
    k.label(E)
    k("s_endpgm")
    return k, 512, 256, 96, f"; @launch kernel={name}_kernel grid=(256,1,1) block=(256,1,1) lds=131072"

if __name__ == "__main__":
    import hz
    k = gen_k1()[0]
    hz.check(k.L, "k1-linear")
```

```python
from ag import *
from layout import *
A_O = {"a": 0, "b": 64}
A_Q = {"a": 128, "b": 160}
A_K, A_V = 192, 224
V_S = {"a": 32, "b": 48}
V_E = 64
V_P = {"a": 80, "b": 88}
V_NM = {"a": 96, "b": 112}
V_L = {"a": 16, "b": 17}
V_THR = {"a": 18, "b": 19}
V_SUM, V_SUM2, V_TM, V_NINF, V_LANEC = 20, 21, 22, 23, 24
V_L16, V_RD, V_ST = 1, 2, 3
V_Q2 = 128
V_T = 160
S_WS = 8
S_W, S_P, S_HEAD = 12, 13, 14
S_SRC, S_SRC2, S_DST, S_RSLOT, S_CNT = 16, 17, 18, 19, 20
S_DA, S_DB = 21, 22
S_REG = 23
S_T = 24
S_KVB = 32
S_J = 33
S_LIM = 34
S_XSRC, S_XDST = 35, 36
S_WLT2 = 37
S_MK = 40
S_RET = 48
S_STA, S_STB = 50, 51
OOB = 0x7ff00000
THR = "0x43800000"
NINF = "0xff800000"
other = {"a": "b", "b": "a"}

def qk(x):
    L = []
    for s_ in range(8):
        c = v(V_NM[x], 16) if s_ == 0 else v(V_S[x], 16)
        L.append(f"v_mfma_f32_32x32x16_bf16 {v(V_S[x],16)}, {a(A_K+4*s_,4)}, {a(A_Q[x]+4*s_,4)}, {c}")
    return L
def pv(x):
    L = []
    for dt in range(4):
        for e in range(2):
            o = a(A_O[x] + 16*dt, 16)
            L.append(f"v_mfma_f32_32x32x16_bf16 {o}, {a(A_V+4*(2*dt+e),4)}, {v(V_P[x]+4*e,4)}, {o}")
    return L
def mask_ops(x, sdelta):
    S_ = V_S[x]
    L = [f"v_add_u32 v{V_TM}, s{sdelta}, v{V_LANEC}"]
    def cst(r):
        g, rr = r // 4, r % 4
        return 16*(g & 1) + 8*(g >> 1) + rr
    cm = [f"v_cmp_le_i32_e64 {s(S_MK+2*(r%4),2)}, {cst(r)}, v{V_TM}" for r in range(16)]
    cn = [f"v_cndmask_b32_e64 v{S_+r}, v{V_NINF}, v{S_+r}, {s(S_MK+2*(r%4),2)}" for r in range(16)]
    L += cm[:3]
    for r in range(16):
        if r + 3 < 16: L.append(cm[r+3])
        elif r < 16: L.append("s_nop 0") if r in (13,) else None
        L.append(cn[r])
    return L
def sm_core(x):
    S_, P = V_S[x], V_P[x]
    L = []
    E = V_E
    L += [f"v_exp_f32 v{E}, v{S_}", f"v_exp_f32 v{E+1}, v{S_+1}"]
    for j in range(8):
        if j < 7:
            L += [f"v_exp_f32 v{E+2*j+2}, v{S_+2*j+2}", f"v_exp_f32 v{E+2*j+3}, v{S_+2*j+3}"]
        else:
            L += ["s_nop 0"]
        if j == 0:
            L += [f"v_add_f32 v{V_SUM}, v{E}, v{E+1}"]
        elif j == 1:
            L += [f"v_add_f32 v{V_SUM2}, v{E+2}, v{E+3}"]
        else:
            L += [f"v_add_f32 v{V_SUM}, v{V_SUM}, v{E+2*j}", f"v_add_f32 v{V_SUM2}, v{V_SUM2}, v{E+2*j+1}"]
        L += [f"v_cvt_pk_bf16_f32 v{P+j}, v{E+2*j}, v{E+2*j+1}"]
    L += [f"v_add_f32 v{V_SUM}, v{V_SUM}, v{V_SUM2}"]
    return L

class Gen:
    def __init__(self, name):
        self.k = K(name + "_kernel"); self.name = name; self.sites = []; self.n = 0
    def check(self, x):
        k = self.k
        self.n += 1
        lab = f"L_{self.name}_s{self.n}"
        k(f"v_cmp_gt_f32 vcc, v{V_SUM}, v{V_THR[x]}")
        k(f"s_cbranch_vccnz {lab}")
        k.label(lab + "r")
        k(f"v_add_f32 v{V_L[x]}, v{V_L[x]}, v{V_SUM}")
        self.sites.append((lab, x))
    def slow(self, x):
        k = self.k
        S_, NM = V_S[x], V_NM[x]
        t = V_T + 64
        k.label(f"L_{self.name}_slow_{x}")
        k("s_nop 7")
        k(f"v_max3_f32 v{t}, v{S_}, v{S_+1}, v{S_+2}")
        for i in range(3, 15, 2):
            k(f"v_max3_f32 v{t}, v{t}, v{S_+i}, v{S_+i+1}")
        k(f"v_max_f32 v{t}, v{t}, v{S_+15}")
        k(f"v_mov_b32 v{t+1}, v{t}")
        k("s_nop 1")
        k(f"v_permlane32_swap_b32 v{t}, v{t+1}")
        k("s_nop 1")
        k(f"v_max_f32 v{t}, v{t}, v{t+1}")
        k(f"v_cmp_gt_f32 vcc, 0, v{V_THR[x]}")
        k("s_nop 1")
        k(f"v_cndmask_b32 v{t+1}, 0, v{V_NINF}, vcc")
        k(f"v_max_f32 v{t}, v{t}, v{t+1}")
        k(f"v_cmp_eq_f32 vcc, v{t}, v{V_NINF}")
        k(f"v_mov_b32 v{t+2}, {THR}")
        k(f"v_mov_b32 v{t+3}, 0")
        k(f"v_cndmask_b32 v{t}, v{t}, v{t+3}, vcc")
        k(f"v_cndmask_b32 v{V_THR[x]}, v{t+2}, v{V_THR[x]}, vcc")
        k(f"v_max_f32 v{t+1}, 0, v{t}")
        k(f"v_exp_f32 v{t+1}, -v{t+1}")
        k(f"v_sub_f32 v{t+2}, v{NM}, v{t}")
        for i in range(16):
            k(f"v_mov_b32 v{NM+i}, v{t+2}")
            k(f"v_sub_f32 v{S_+i}, v{S_+i}, v{t}")
        k(f"v_mul_f32 v{V_L[x]}, v{V_L[x]}, v{t+1}")
        for i in range(0, 64, 4):
            for r in range(4): k(f"v_accvgpr_read_b32 v{t+4+r}, a{A_O[x]+i+r}")
            for r in range(4): k(f"v_mul_f32 v{t+4+r}, v{t+4+r}, v{t+1}")
            for r in range(4): k(f"v_accvgpr_write_b32 a{A_O[x]+i+r}, v{t+4+r}")
        for l in sm_core(x): k(l)
        k("s_nop 1")
        k(f"s_setpc_b64 {s(S_RET,2)}")
    def tramps(self):
        k = self.k
        for lab, x in self.sites:
            k.label(lab)
            k(f"s_call_b64 {s(S_RET,2)}, L_{self.name}_slow_{x}")
            k(f"s_branch {lab}r")

    def body(self, phase, masked):
        k = self.k
        nv = 8 if phase == 1 else 16
        k(f"s_waitcnt vmcnt({nv}) lgkmcnt(0)")
        k("s_barrier")
        k(f"v_add_u32 v{V_RD}, s{S_RSLOT}, v{V_L16}")
        kr = [f"ds_read_b128 {a(A_K+4*i,4)}, v{V_RD} offset:{i*1024}" for i in range(8)]
        vr = [f"ds_read_b128 {a(A_V+4*i,4)}, v{V_RD} offset:{8192+i*1024}" for i in range(8)]
        sm = (mask_ops("a", S_DA) if masked else []) + sm_core("a")
        for l in merge(qk("b") + pv("b"), [(sm, 0, 16), (kr, 1, 9), (vr[:7], 9, 16)]): k(l)
        self.check("a")
        k("s_waitcnt lgkmcnt(7)")
        sm = (mask_ops("b", S_DB) if masked else []) + sm_core("b")
        d = []
        if phase == 1:
            d.append([f"s_mov_b32 m0, s{S_DST}",
                      f"s_add_u32 s{S_DST}, s{S_DST}, 16384",
                      f"s_and_b32 s{S_DST}, s{S_DST}, 0xffff"])
            for i in range(4):
                d.append(f"buffer_load_dwordx4 v{V_L16}, {s(S_WS,4)}, s{S_SRC} offen offset:{1024*i} lds")
            if not masked:
                d.append(f"s_add_u32 s{S_SRC}, s{S_SRC}, 16384")
            else:
                d.append([f"s_add_u32 s{S_T}, s{S_WLT2}, 16384",
                          f"s_cmp_eq_u32 s{S_J}, 0",
                          f"s_cselect_b32 s{S_T}, s{S_T}, 0x8000",
                          f"s_add_u32 s{S_SRC}, s{S_SRC}, s{S_T}"])
                d.append([f"s_mov_b32 m0, s{S_XDST}",
                          f"s_add_u32 s{S_XDST}, s{S_XDST}, 16384",
                          f"s_and_b32 s{S_XDST}, s{S_XDST}, 0xffff",
                          f"s_or_b32 s{S_XDST}, s{S_XDST}, 0x10000"])
                for i in range(4):
                    d.append(f"buffer_load_dwordx4 v{V_L16}, {s(S_WS,4)}, s{S_XSRC} offen offset:{1024*i} lds")
                d.append([f"s_add_u32 s{S_XSRC}, s{S_XSRC}, 0x8000", f"s_add_u32 s{S_J}, s{S_J}, 1"])
        else:
            d.append([f"s_cmp_lt_u32 s{S_SRC}, s{S_LIM}",
                      f"s_cselect_b32 s{S_T}, s{S_SRC}, {OOB:#x}",
                      f"s_mov_b32 m0, s{S_DST}",
                      f"s_add_u32 s{S_T+1}, s{S_T}, 4096"])
            for i in range(4):
                d.append(f"buffer_load_dwordx4 v{V_L16}, {s(S_WS,4)}, s{S_T} offen offset:{1024*i} lds")
            d.append([f"s_add_u32 m0, s{S_DST}, 4096",
                      f"s_add_u32 s{S_DST}, s{S_DST}, 16384"])
            for i in range(4):
                d.append(f"buffer_load_dwordx4 v{V_L16}, {s(S_WS,4)}, s{S_T+1} offen offset:{1024*i} lds")
            d.append([f"s_and_b32 s{S_DST}, s{S_DST}, 0xffff",
                      f"s_or_b32 s{S_DST}, s{S_DST}, s{S_REG}",
                      f"s_add_u32 s{S_SRC}, s{S_SRC}, 0x8000"])
        misc = [f"s_add_u32 s{S_RSLOT}, s{S_RSLOT}, 16384",
                f"s_and_b32 s{S_RSLOT}, s{S_RSLOT}, 0xffff",
                f"s_or_b32 s{S_RSLOT}, s{S_RSLOT}, s{S_REG}",
                f"s_sub_u32 s{S_CNT}, s{S_CNT}, 1"]
        mf = qk("a") + pv("a")
        mf[8] = "s_waitcnt lgkmcnt(0)\n    " + mf[8]
        out = merge(mf, [(sm, 0, 16), (vr[7:], 0, 1), (d, 1, 15), (misc, 2, 14)])
        for l in out:
            for ll in l.split("\n    "): k(ll)
        if masked:
            st = 32 if phase == 1 else 64
            k(f"s_sub_u32 s{S_DA}, s{S_DA}, {st}")
            k(f"s_sub_u32 s{S_DB}, s{S_DB}, {st}")
        self.check("b")
        k(f"s_cmp_lg_u32 s{S_CNT}, 0")

    def finalize(self, x, sbase, scale_reg):
        k = self.k
        for dt in range(4):
            for e in range(2):
                t = V_T + ((2*dt+e) % 2) * 12
                for r in range(8): k(f"v_accvgpr_read_b32 v{t+r}, a{A_O[x]+16*dt+8*e+r}")
                for r in range(8): k(f"v_mul_f32 v{t+r}, v{t+r}, v{scale_reg}")
                for r in range(4): k(f"v_cvt_pk_bf16_f32 v{t+8+r}, v{t+2*r}, v{t+2*r+1}")
                k(f"buffer_store_dwordx4 {v(t+8,4)}, v{V_ST}, {s(S_WS,4)}, s{sbase} offen offset:{dt*1024+e*512}")
    def halfsum(self, r, t):
        k = self.k
        k(f"v_mov_b32 v{t}, v{r}")
        k("s_nop 1")
        k(f"v_permlane32_swap_b32 v{r}, v{t}")
        k("s_nop 1")
        k(f"v_add_f32 v{r}, v{r}, v{t}")

def gen_k2(name="attn"):
    G = Gen(name); k = G.k
    E = f"L_{name}_end"
    k("s_cmp_ge_u32 s2, 256")
    k(f"s_cbranch_scc1 {E}")
    k("s_load_dwordx2 s[4:5], s[0:1], 96")
    k("v_lshrrev_b32 v4, 6, v0")
    k("v_and_b32 v0, 63, v0")
    k(f"v_readfirstlane_b32 s{S_W}, v4")
    k(f"v_lshlrev_b32 v{V_L16}, 4, v0")
    k("v_and_b32 v5, 31, v0")
    k("v_lshrrev_b32 v6, 5, v0")
    k("v_lshlrev_b32 v7, 2, v6")
    k(f"v_sub_u32 v{V_LANEC}, v5, v7")
    k("v_lshrrev_b32 v7, 4, v5")
    k(f"v_mul_u32_u24 v{V_ST}, {KS3*1024}, v7")
    k(f"v_lshl_add_u32 v{V_ST}, v6, 8, v{V_ST}")
    k("v_and_b32 v7, 15, v5")
    k(f"v_lshl_add_u32 v{V_ST}, v7, 4, v{V_ST}")
    k(f"v_mov_b32 v{V_NINF}, {NINF}")
    k("s_and_b32 s3, s2, 7")
    k("s_lshr_b32 s6, s2, 3")
    k("s_and_b32 s7, s6, 3")
    k("s_lshl_b32 s3, s3, 2")
    k(f"s_add_u32 s{S_HEAD}, s3, s7")
    k(f"s_lshr_b32 s{S_P}, s6, 2")
    k("s_waitcnt lgkmcnt(0)")
    k.srd(S_WS, 4, WS_USED)
    k(f"s_lshl_b32 s{S_KVB}, s{S_HEAD}, 20")
    k(f"s_add_u32 s{S_KVB}, s{S_KVB}, {KV_OFF}")
    k(f"s_cmp_lt_u32 s{S_W}, 2")
    k(f"s_cselect_b32 s{S_WLT2}, 16384, 0")
    k(f"s_lshl_b32 s{S_T}, s{S_W}, 12")
    k(f"s_add_u32 s{S_T+1}, s{S_T}, s{S_KVB}")
    k(f"s_cselect_b32 s{S_T+2}, s{S_T+1}, {OOB:#x}")
    k(f"s_cmp_lt_u32 s{S_W}, 2")
    k(f"s_cselect_b32 s{S_T+2}, s{S_T+1}, {OOB:#x}")
    k(f"s_add_u32 m0, s{S_T}, {3*16384}")
    k("s_nop 0")
    for i in range(4):
        k(f"buffer_load_dwordx4 v{V_L16}, {s(S_WS,4)}, s{S_T+2} offen offset:{1024*i} lds")
    k(f"s_lshl_b32 s{S_T+3}, s{S_P}, 2")
    k(f"s_add_u32 s{S_T+3}, s{S_T+3}, s{S_W}")
    k(f"s_lshl_b32 s{S_T+4}, s{S_P}, 2")
    k(f"s_sub_u32 s{S_T+4}, 60, s{S_T+4}")
    k(f"s_xor_b32 s{S_T+5}, s{S_W}, 1")
    k(f"s_add_u32 s{S_T+5}, s{S_T+5}, s{S_T+4}")
    k(f"s_add_u32 s{S_T+4}, s{S_T+4}, s{S_W}")
    k(f"s_lshl_b32 s{S_T+6}, s{S_HEAD}, 19")
    k(f"s_add_u32 s{S_T+6}, s{S_T+6}, {QF_OFF}")
    def loadq(stile, dst):
        k(f"s_lshl_b32 s{S_T+7}, s{stile}, 13")
        k(f"s_add_u32 s{S_T+7}, s{S_T+7}, s{S_T+6}")
        for i in range(4): k(f"buffer_load_dwordx4 {dst(i)}, v{V_L16}, {s(S_WS,4)}, s{S_T+7} offen offset:{1024*i}")
        k(f"s_add_u32 s{S_T+7}, s{S_T+7}, 4096")
        for i in range(4, 8): k(f"buffer_load_dwordx4 {dst(i)}, v{V_L16}, {s(S_WS,4)}, s{S_T+7} offen offset:{1024*(i-4)}")
    loadq(S_T+3, lambda i: a(A_Q["a"]+4*i, 4))
    loadq(S_T+4, lambda i: a(A_Q["b"]+4*i, 4))
    k(f"s_add_u32 s{S_SRC}, s{S_T+1}, s{S_WLT2}")
    k(f"s_mov_b32 s{S_DST}, s{S_T}")
    for u in range(3):
        k(f"s_mov_b32 m0, s{S_DST}")
        k(f"s_add_u32 s{S_DST}, s{S_DST}, 16384")
        for i in range(4):
            k(f"buffer_load_dwordx4 v{V_L16}, {s(S_WS,4)}, s{S_SRC} offen offset:{1024*i} lds")
        k(f"s_add_u32 s{S_SRC}, s{S_SRC}, 16384")
        if u == 0: loadq(S_T+5, lambda i: v(V_Q2+4*i, 4))
    k(f"s_lshl_b32 s{S_T+7}, s{S_HEAD}, 12")
    k(f"s_add_u32 s{S_T+7}, s{S_T+7}, {AF_OFF}")
    k(f"s_mul_i32 s{S_STA}, s{S_T+3}, {2*KS3*1024}")
    k(f"s_add_u32 s{S_STA}, s{S_STA}, s{S_T+7}")
    k(f"s_mul_i32 s{S_STB}, s{S_T+4}, {2*KS3*1024}")
    k(f"s_add_u32 s{S_STB}, s{S_STB}, s{S_T+7}")
    k(f"s_lshl_b32 s{S_T+7}, s{S_P}, 16")
    k(f"s_add_u32 s{S_T+7}, s{S_T+7}, {3*16384}")
    k(f"s_add_u32 s{S_T+7}, s{S_T+7}, s{S_T+1}")
    k(f"s_lshl_b32 s{S_XSRC}, s{S_WLT2}, 1")
    k(f"s_add_u32 s{S_XSRC}, s{S_XSRC}, s{S_T+7}")
    k(f"s_add_u32 s{S_XDST}, s{S_T}, {0x10000 + 3*16384}")
    k(f"s_mov_b32 s{S_J}, 0")
    k(f"s_mov_b32 s{S_REG}, 0")
    k(f"s_mov_b32 s{S_RSLOT}, 0")
    k(f"s_lshl_b32 s{S_DA}, s{S_W}, 5")
    k(f"s_mov_b32 s{S_DB}, 4096")
    for i in range(128): k(f"v_accvgpr_write_b32 a{i}, 0")
    for i in range(32): k(f"v_accvgpr_write_b32 a{A_V+i}, 0")
    for x in "ab":
        for i in range(16): k(f"v_mov_b32 v{V_NM[x]+i}, 0")
        k(f"v_mov_b32 v{V_L[x]}, 0")
        k(f"v_mov_b32 v{V_THR[x]}, -1.0")
    for i in range(8): k(f"v_mov_b32 v{V_P['b']+i}, 0")
    def start_phase(nvm):
        k(f"s_waitcnt vmcnt({nvm})")
        k("s_barrier")
        k(f"s_add_u32 s{S_T}, s{S_REG}, {3*16384}")
        k(f"v_add_u32 v{V_RD}, s{S_T}, v{V_L16}")
        for i in range(8): k(f"ds_read_b128 {a(A_K+4*i,4)}, v{V_RD} offset:{i*1024}")
        k("s_waitcnt lgkmcnt(0)")
        for l in qk("a"): k(l)
        k("s_nop 7")
    start_phase(20)
    k(f"s_lshl_b32 s{S_CNT}, s{S_P}, 2")
    k(f"s_cmp_eq_u32 s{S_CNT}, 0")
    k(f"s_cbranch_scc1 L_{name}_m1pre")
    k.label(f"L_{name}_n1")
    G.body(1, False)
    k(f"s_cbranch_scc1 L_{name}_n1")
    k.label(f"L_{name}_m1pre")
    k(f"s_mov_b32 s{S_CNT}, 4")
    k.label(f"L_{name}_m1")
    G.body(1, True)
    k(f"s_cbranch_scc1 L_{name}_m1")
    k("s_nop 1")
    for l in pv("b"): k(l)
    G.halfsum(V_L["a"], V_T)
    k(f"v_rcp_f32 v{V_SUM}, v{V_L['a']}")
    k("s_nop 0")
    G.finalize("a", S_STA, V_SUM)
    for i in range(64): k(f"v_accvgpr_write_b32 a{A_O['a']+i}, 0")
    for i in range(32): k(f"v_accvgpr_write_b32 a{A_Q['a']+i}, v{V_Q2+i}")
    for i in range(16): k(f"v_mov_b32 v{V_NM['a']+i}, 0")
    k(f"v_mov_b32 v{V_L['a']}, 0")
    k(f"v_mov_b32 v{V_THR['a']}, -1.0")
    for i in range(8): k(f"v_mov_b32 v{V_P['b']+i}, 0")
    k(f"s_and_b32 s{S_T}, s{S_W}, 1")
    k(f"s_lshl_b32 s{S_REG}, s{S_T}, 16")
    k(f"s_mov_b32 s{S_RSLOT}, s{S_REG}")
    k(f"s_lshr_b32 s{S_T+1}, s{S_W}, 1")
    k(f"s_lshl_b32 s{S_T+2}, s{S_P}, 2")
    k(f"s_add_u32 s{S_T+2}, s{S_T+2}, s{S_T}")
    k(f"s_add_u32 s{S_T+2}, s{S_T+2}, 10")
    k(f"s_lshl_b32 s{S_T+2}, s{S_T+2}, 14")
    k(f"s_add_u32 s{S_T+2}, s{S_T+2}, s{S_KVB}")
    k(f"s_cmp_eq_u32 s{S_T+1}, 0")
    k(f"s_movk_i32 s{S_T+3}, 0x2000")
    k(f"s_cselect_b32 s{S_T+3}, 0x8000, s{S_T+3}")
    k(f"s_add_u32 s{S_SRC}, s{S_T+2}, s{S_T+3}")
    k(f"s_lshl_b32 s{S_T+3}, s{S_T+1}, 13")
    k(f"s_add_u32 s{S_DST}, s{S_T+3}, {3*16384}")
    k(f"s_or_b32 s{S_DST}, s{S_DST}, s{S_REG}")
    k(f"s_lshl_b32 s{S_T+3}, s{S_P}, 2")
    k(f"s_sub_u32 s{S_T+3}, 64, s{S_T+3}")
    k(f"s_lshl_b32 s{S_T+3}, s{S_T+3}, 14")
    k(f"s_add_u32 s{S_LIM}, s{S_T+3}, s{S_KVB}")
    k(f"s_xor_b32 s{S_T+3}, s{S_W}, 1")
    k(f"s_sub_u32 s{S_T+3}, s{S_T+3}, s{S_T}")
    k(f"s_lshl_b32 s{S_DA}, s{S_T+3}, 5")
    k(f"s_sub_u32 s{S_T+3}, s{S_W}, s{S_T}")
    k(f"s_lshl_b32 s{S_DB}, s{S_T+3}, 5")
    start_phase(0)
    k(f"s_lshl_b32 s{S_T}, s{S_P}, 2")
    k(f"s_sub_u32 s{S_CNT}, 28, s{S_T}")
    k(f"s_cmp_eq_u32 s{S_CNT}, 0")
    k(f"s_cbranch_scc1 L_{name}_m2pre")
    k.label(f"L_{name}_n2")
    G.body(2, False)
    k(f"s_cbranch_scc1 L_{name}_n2")
    k.label(f"L_{name}_m2pre")
    k(f"s_mov_b32 s{S_CNT}, 2")
    k.label(f"L_{name}_m2")
    G.body(2, True)
    k(f"s_cbranch_scc1 L_{name}_m2")
    k("s_nop 1")
    for l in pv("b"): k(l)
    k("s_waitcnt vmcnt(0) lgkmcnt(0)")
    k("s_barrier")
    k(f"s_mul_i32 s{S_T}, s{S_W}, 17408")
    k(f"v_add_u32 v{V_RD}, s{S_T}, v{V_L16}")
    for i in range(16):
        k(f"ds_write_b128 v{V_RD}, {a(A_O['a']+4*i,4)} offset:{i*1024}")
    t = V_T
    k(f"v_cmp_gt_f32 vcc, 0, v{V_THR['a']}")
    k(f"v_sub_f32 v{t}, 0, v{V_NM['a']}")
    k(f"v_mov_b32 v{t+2}, 0xff7fffff")
    k(f"v_cndmask_b32 v{t}, v{t}, v{t+2}, vcc")
    k(f"v_mov_b32 v{t+1}, v{V_L['a']}")
    k(f"v_lshrrev_b32 v{t+3}, 1, v{V_L16}")
    k(f"v_add_u32 v{t+3}, s{S_T}, v{t+3}")
    k(f"ds_write_b64 v{t+3}, {v(t,2)} offset:16384")
    k("s_waitcnt lgkmcnt(0)")
    k("s_barrier")
    k(f"s_xor_b32 s{S_T+1}, s{S_W}, 1")
    k(f"s_mul_i32 s{S_T+1}, s{S_T+1}, 17408")
    k(f"v_add_u32 v{V_RD}, s{S_T+1}, v{V_L16}")
    k(f"v_lshrrev_b32 v{t+3}, 1, v{V_L16}")
    k(f"v_add_u32 v{t+3}, s{S_T+1}, v{t+3}")
    k(f"ds_read_b64 {v(t,2)}, v{t+3} offset:16384")
    O2 = 32
    for i in range(16):
        k(f"ds_read_b128 {v(O2+4*i,4)}, v{V_RD} offset:{i*1024}")
        if i == 8: k("s_waitcnt lgkmcnt(4)")
    k("s_waitcnt lgkmcnt(0)")
    k(f"v_sub_f32 v{t+2}, 0, v{V_NM['b']}")
    k(f"v_max_f32 v{t+3}, v{t+2}, v{t}")
    k(f"v_sub_f32 v{t+2}, v{t+2}, v{t+3}")
    k(f"v_sub_f32 v{t}, v{t}, v{t+3}")
    k(f"v_exp_f32 v{t+2}, v{t+2}")
    k(f"v_exp_f32 v{t}, v{t}")
    k("s_nop 0")
    k(f"v_mul_f32 v{t+4}, v{V_L['b']}, v{t+2}")
    k(f"v_fmac_f32 v{t+4}, v{t+1}, v{t}")
    G.halfsum(t+4, t+5)
    k(f"v_rcp_f32 v{t+4}, v{t+4}")
    k("s_nop 0")
    k(f"v_mul_f32 v{V_SUM}, v{t+2}, v{t+4}")
    k(f"v_mul_f32 v{V_SUM2}, v{t}, v{t+4}")
    for dt in range(4):
        for e in range(2):
            tt = V_T + 8 + ((2*dt+e) % 2) * 12
            b = 16*dt + 8*e
            for r in range(8): k(f"v_accvgpr_read_b32 v{tt+r}, a{A_O['b']+b+r}")
            for r in range(8): k(f"v_mul_f32 v{tt+r}, v{tt+r}, v{V_SUM}")
            for r in range(8): k(f"v_fmac_f32 v{tt+r}, v{O2+b+r}, v{V_SUM2}")
            for r in range(4): k(f"v_cvt_pk_bf16_f32 v{tt+8+r}, v{tt+2*r}, v{tt+2*r+1}")
            k(f"buffer_store_dwordx4 {v(tt+8,4)}, v{V_ST}, {s(S_WS,4)}, s{S_STB} offen offset:{dt*1024+e*512}")
    k.label(E)
    k("s_endpgm")
    G.tramps()
    G.slow("a"); G.slow("b")
    return k, 512, 256, 96, f"; @launch kernel={name}_kernel grid=(256,1,1) block=(256,1,1) lds=131072"
if __name__ == "__main__":
    import hz
    k = gen_k2()[0]
    hz.check(hz.trace(k.L, {"L_attn_n1": [True], "L_attn_m1": [True, True], "L_attn_n2": [True, True], "L_attn_m2": [True]}), "k2")
    d = {"L_attn_n1": [True], "L_attn_m1": [True, True], "L_attn_n2": [True, True], "L_attn_m2": [True]}
    for i in range(1, 9): d[f"L_attn_s{i}"] = [True, False, True]
    hz.check(hz.trace(k.L, d), "k2-slow")
```

```python
from ag import *
from layout import *
R = 8
V_TR = 2
V_DMA = 6
V_TOK = 8
V_X = 12
V_W = 16
V_ACC = 48
V_T = 112
S_WS, S_WO, S_WD, S_PF, S_OUT, S_X = 8, 12, 16, 20, 24, 28
S_W, S_C, S_LB, S_TB, S_COL = 32, 33, 34, 35, 36
S_T = 40
S_K1, S_K2 = 48, 49
OOB = 0x7ff00000
def accr(mt, T): return V_ACC + (mt*4 + T)*4

def prefetch(slot):
    L = []
    L.append([f"s_cmp_lt_u32 s{S_C}, 128",
              f"s_cselect_b32 s{S_PF}, s{S_WO}, s{S_WD}",
              f"s_cselect_b32 s{S_PF+1}, s{S_WO+1}, s{S_WD+1}",
              f"s_cselect_b32 s{S_PF+2}, s{S_WO+2}, s{S_WD+2}",
              f"s_cselect_b32 s{S_K1}, {15*1024}, s{S_T+4}",
              f"s_cselect_b32 s{S_K2}, {6*1024}, s{S_T+5}",
              f"s_and_b32 s{S_T}, s{S_C}, 127",
              f"s_lshl_b32 s{S_T}, s{S_T}, 15",
              f"s_add_u32 s{S_T}, s{S_T}, s{S_COL}",
              f"s_lshl_b32 s{S_T+1}, s{S_C}, 10",
              f"s_add_u32 s{S_T+1}, s{S_T+1}, s{S_TB}",
              f"s_cmp_lt_u32 s{S_C}, {KS3}",
              f"s_cselect_b32 s{S_T}, s{S_T}, {OOB:#x}",
              f"s_cselect_b32 s{S_T+1}, s{S_T+1}, {OOB:#x}",
              f"s_add_u32 m0, s{S_LB}, {slot*4096}",
              f"s_add_u32 s{S_C}, s{S_C}, 4"])
    for i in range(4):
        pre = []
        if i == 0: so = f"s{S_T}"
        else:
            src = {1: f"s{S_K1}", 2: f"s{S_K2}", 3: f"{21*1024}"}[i]
            pre = [f"s_add_u32 s{S_T+2}, s{S_T}, {src}"]; so = f"s{S_T+2}"
        L.append(pre + [f"buffer_load_dwordx4 v{V_DMA}, {s(S_PF,4)}, {so} offen offset:{1024*i} lds"])
    for T in range(4):
        L.append(f"buffer_load_dwordx4 {v(V_T + slot*16 + T*4, 4)}, v{V_TOK+T}, {s(S_WS,4)}, s{S_T+1} offen")
    return L
def tr_reads(slot, buf):
    return [f"ds_read_b64_tr_b16 {v(V_W + buf*16 + mt*4 + j*2, 2)}, v{V_TR+mt} offset:{slot*4096 + j*2048}" for mt in range(4) for j in range(2)]

def gen_k3(name="outp"):
    k = K(name + "_kernel")
    E = f"L_{name}_end"
    k("s_cmp_ge_u32 s2, 256")
    k(f"s_cbranch_scc1 {E}")
    k("s_load_dwordx2 s[64:65], s[0:1], 0")
    k("s_load_dwordx2 s[66:67], s[0:1], 40")
    k("s_load_dwordx4 s[68:71], s[0:1], 72")
    k("s_load_dwordx2 s[72:73], s[0:1], 96")
    k("v_lshrrev_b32 v1, 6, v0")
    k("v_and_b32 v0, 63, v0")
    k(f"v_readfirstlane_b32 s{S_W}, v1")
    k("v_lshrrev_b32 v15, 5, v0")
    k("v_bfe_u32 v16, v0, 2, 3")
    k("v_and_b32 v17, 3, v0")
    k("v_lshlrev_b32 v18, 10, v15")
    k("v_lshl_add_u32 v18, v16, 7, v18")
    k("v_lshl_add_u32 v18, v17, 3, v18")
    k("v_lshrrev_b32 v19, 1, v16")
    k("v_lshl_add_u32 v18, v19, 5, v18")
    k("v_lshl_add_u32 v18, v1, 15, v18")
    for mt in range(4):
        k(f"v_xor_b32 v{V_TR+mt}, {mt*32}, v18")
    k("v_lshrrev_b32 v15, 3, v0")
    k("v_and_b32 v16, 7, v0")
    k("v_and_b32 v17, 6, v15")
    k("v_xor_b32 v16, v16, v17")
    k(f"v_lshlrev_b32 v{V_DMA}, 10, v15")
    k(f"v_lshl_add_u32 v{V_DMA}, v16, 4, v{V_DMA}")
    k(f"v_lshlrev_b32 v{V_TOK}, 4, v0")
    for T in range(1, 4):
        k(f"v_add_u32 v{V_TOK+T}, {T*KS3*1024}, v{V_TOK}")
    k("s_and_b32 s3, s2, 7")
    k("s_lshr_b32 s4, s2, 3")
    k("s_and_b32 s5, s4, 3")
    k("s_lshl_b32 s3, s3, 2")
    k("s_add_u32 s3, s3, s5")
    k("s_lshr_b32 s4, s4, 2")
    k(f"s_lshl_b32 s{S_COL}, s4, 7")
    k(f"s_mul_i32 s{S_TB}, s3, {4*KS3*1024}")
    k(f"s_add_u32 s{S_TB}, s{S_TB}, {AF_OFF}")
    k(f"s_lshl_b32 s{S_LB}, s{S_W}, 15")
    k(f"s_mov_b32 s{S_C}, s{S_W}")
    k(f"s_mov_b32 s{S_T+4}, {7*1024}")
    k(f"s_mov_b32 s{S_T+5}, {14*1024}")
    k("s_waitcnt lgkmcnt(0)")
    k.srd(S_WS, 72, WS_USED)
    k.srd(S_WO, 66, H*D*M*2)
    k.srd(S_WD, 68, F*M*2)
    k.srd(S_PF, 66, H*D*M*2)
    k.srd(S_OUT, 70, S*M*2)
    k.srd(S_X, 64, S*M*2)
    def emit(items):
        for it in items:
            if isinstance(it, list):
                for l in it: k(l)
            else: k(it)
    for st in range(R-1):
        emit(prefetch(st))
    k("v_and_b32 v15, 15, v0")
    k("v_lshrrev_b32 v16, 4, v0")
    k(f"v_lshlrev_b32 v{V_X}, 10, v15")
    k(f"v_lshl_add_u32 v{V_X}, v16, 5, v{V_X}")
    k("s_lshl_b32 s5, s3, 16")
    k(f"s_lshl_b32 s6, s{S_W}, 14")
    k("s_add_u32 s5, s5, s6")
    k(f"s_add_u32 s5, s5, s{S_COL}")
    for i in range(64):
        k(f"v_mov_b32 v{V_ACC+i}, 0")
    k(f"s_waitcnt vmcnt({8*(R-2)})")
    emit(tr_reads(0, 0))
    k(f"s_mov_b32 s6, 43")
    k.label(f"L_{name}_loop")
    for st in range(R):
        buf = st % 2
        k(f"s_waitcnt vmcnt({8*(R-3)}) lgkmcnt(0)")
        mf = [f"v_mfma_f32_16x16x32_bf16 {v(accr(mt,T),4)}, {v(V_W+buf*16+mt*4,4)}, {v(V_T+st*16+T*4,4)}, {v(accr(mt,T),4)}" for mt in range(4) for T in range(4)]
        streams = [(tr_reads((st+1) % R, 1-buf), 0, 8), (prefetch((st+R-1) % R), 0, 16)]
        for l in merge(mf, streams): k(l)
        k("s_sub_u32 s6, s6, 1")
        k("s_cmp_eq_u32 s6, 0")
        if st < R-1: k(f"s_cbranch_scc1 L_{name}_fin")
        else: k(f"s_cbranch_scc0 L_{name}_loop")
    k.label(f"L_{name}_fin")
    k(f"buffer_load_dwordx4 v[16:19], v{V_X}, {s(S_X,4)}, s5 offen")
    k(f"buffer_load_dwordx4 v[20:23], v{V_X}, {s(S_X,4)}, s5 offen offset:16")
    k("s_waitcnt vmcnt(2) lgkmcnt(0)")
    k(f"v_lshlrev_b32 v14, 4, v0")
    k(f"v_add_u32 v14, s{S_LB}, v14")
    k("s_nop 4")
    for t in range(16):
        k(f"ds_write_b128 v14, {v(V_ACC+t*4,4)} offset:{t*1024}")
    k("s_waitcnt lgkmcnt(0)")
    k("s_barrier")
    k("v_and_b32 v15, 15, v0")
    k("v_lshrrev_b32 v13, 4, v0")
    k("v_lshlrev_b32 v14, 12, v13")
    k("v_lshl_add_u32 v14, v15, 4, v14")
    k(f"s_lshl_b32 s7, s{S_W}, 10")
    k("v_add_u32 v14, s7, v14")
    k("v_add_u32 v13, 0x10000, v14")
    for ws_ in range(4):
        for g in range(4):
            ad = "v14" if ws_ < 2 else "v13"
            k(f"ds_read_b128 {v(V_T + ws_*16 + g*4, 4)}, {ad} offset:{(ws_%2)*32768 + g*256}")
        if ws_ == 1: k("s_waitcnt lgkmcnt(4)")
    k("s_waitcnt vmcnt(0) lgkmcnt(0)")
    for i in range(16):
        k(f"v_add_f32 v{V_T+i}, v{V_T+i}, v{V_T+16+i}")
        k(f"v_add_f32 v{V_T+32+i}, v{V_T+32+i}, v{V_T+48+i}")
    for i in range(8):
        k(f"v_lshlrev_b32 v{V_T+16+2*i}, 16, v{16+i}")
        k(f"v_and_b32 v{V_T+16+2*i+1}, 0xffff0000, v{16+i}")
    for i in range(16):
        k(f"v_add_f32 v{V_T+i}, v{V_T+i}, v{V_T+32+i}")
        k(f"v_add_f32 v{V_T+i}, v{V_T+i}, v{V_T+16+i}")
    for i in range(8):
        k(f"v_cvt_pk_bf16_f32 v{24+i}, v{V_T+2*i}, v{V_T+2*i+1}")
    k(f"buffer_store_dwordx4 v[24:27], v{V_X}, {s(S_OUT,4)}, s5 offen")
    k(f"buffer_store_dwordx4 v[28:31], v{V_X}, {s(S_OUT,4)}, s5 offen offset:16")
    k.label(E)
    k("s_endpgm")
    return k, 240, 240, 96, f"; @launch kernel={name}_kernel grid=(256,1,1) block=(256,1,1) lds=131072"
if __name__ == "__main__":
    import hz
    k = gen_k3()[0]
    hz.check(hz.trace(k.L, {"L_outp_loop": [True], "L_outp_fin": [False]*7 + [False]*2 + [True]}), "k3")
```

```python
import re
REG = re.compile(r"^(-?)(\|?)(abs\()?([vas])(\d+)\)?\|?$")
RNG = re.compile(r"^(-?)([vas])\[(\d+):(\d+)\]$")
def regs(op):
    op = op.strip()
    if op in ("vcc",): return [("s", 106), ("s", 107)]
    if op == "vcc_lo": return [("s", 106)]
    if op == "vcc_hi": return [("s", 107)]
    if op == "exec": return [("s", 126), ("s", 127)]
    if op == "m0": return [("s", 124)]
    if op == "scc": return []
    m = REG.match(op)
    if m: return [(m.group(4), int(m.group(5)))]
    m = RNG.match(op)
    if m: return [(m.group(2), i) for i in range(int(m.group(3)), int(m.group(4)) + 1)]
    return []
TRANS = ("v_exp_f32", "v_log_f32", "v_rcp_f32", "v_rsq_f32", "v_sqrt_f32", "v_sin_f32", "v_cos_f32")
class I:
    __slots__ = ("txt", "mn", "ops", "mods", "rd", "wr", "kind", "passes", "srcc", "srcab", "ws", "lineno", "data", "addr", "lds")
def parse(line, lineno=0):
    t = line.split(";")[0].strip()
    if not t or t.endswith(":") or t.startswith("."): return None
    sp = t.split(None, 1)
    mn = sp[0]
    rest = sp[1] if len(sp) > 1 else ""
    for suf in ("_e32", "_e64", "_dpp"):
        if mn.endswith(suf): mn = mn[:-4]
    parts = []
    if rest:
        depth = 0; cur = ""
        for ch in rest:
            if ch in "[(": depth += 1
            if ch in "])": depth -= 1
            if ch == "," and depth == 0:
                parts.append(cur.strip()); cur = ""
            else: cur += ch
        parts.append(cur.strip())
    mods = []
    if parts:
        last = parts[-1].split()
        if mn.startswith("s_waitcnt"):
            mods = rest.split(); parts = []
        else:
            parts[-1] = last[0]; mods = last[1:]
    i = I(); i.txt = t; i.mn = mn; i.ops = parts; i.mods = mods; i.rd = []; i.wr = []; i.kind = None
    i.passes = 0; i.srcc = []; i.srcab = []; i.ws = 1; i.lineno = lineno; i.data = []; i.addr = []; i.lds = False
    R = lambda k: regs(parts[k]) if k < len(parts) else []
    if mn.startswith("v_mfma"):
        i.kind = "mfma"; i.passes = 8 if "32x32" in mn else 4
        i.wr = R(0); i.srcab = R(1) + R(2); i.srcc = R(3); i.rd = i.srcab + i.srcc
    elif mn.startswith("v_cmp"):
        i.kind = "valu"; i.wr = R(0); i.rd = R(1) + R(2)
    elif mn in ("v_readfirstlane_b32", "v_readlane_b32"):
        i.kind = "valu"; i.wr = R(0); i.rd = R(1) + R(2)
    elif mn.startswith("v_permlane"):
        i.kind = "valu"; i.wr = R(0) + R(1); i.rd = R(0) + R(1)
    elif mn.startswith("v_"):
        i.kind = "valu"; i.wr = R(0); i.rd = sum((R(k) for k in range(1, len(parts))), [])
        if mn.startswith(("v_fmac", "v_dot2c", "v_pk_fmac")): i.rd += R(0)
        if mn in ("v_add_co_u32", "v_sub_co_u32", "v_addc_co_u32"):
            i.wr = R(0) + R(1); i.rd = sum((R(k) for k in range(2, len(parts))), [])
    elif mn.startswith("ds_read") or mn.startswith("ds_bpermute") or mn.startswith("ds_swizzle"):
        i.kind = "ds"; i.wr = R(0); i.rd = sum((R(k) for k in range(1, len(parts))), [])
    elif mn.startswith("ds_write"):
        i.kind = "ds"; i.rd = sum((R(k) for k in range(0, len(parts))), [])
    elif mn.startswith("buffer_load"):
        i.kind = "vm"
        if "lds" in mods:
            i.lds = True; i.rd = R(0) + R(1) + R(2) + [("s", 124)]
        else:
            i.wr = R(0); i.rd = R(1) + R(2) + R(3)
    elif mn.startswith("buffer_store") or mn.startswith("buffer_atomic"):
        i.kind = "vm"; i.rd = R(0) + R(1) + R(2) + R(3); i.data = R(0)
        if mn.startswith("buffer_atomic") and "sc0" in mods: i.wr = R(0)
    elif mn.startswith("buffer_wbl2") or mn.startswith("buffer_inv"):
        i.kind = "vm"
    elif mn.startswith("s_load") or mn.startswith("s_memtime") or mn.startswith("s_memrealtime") or mn.startswith("s_buffer_load"):
        i.kind = "smem"; i.wr = R(0); i.rd = R(1)
    elif mn == "s_nop":
        i.kind = "nop"; i.ws = int(parts[0], 0) + 1
    elif mn == "s_waitcnt":
        i.kind = "wait"
    elif mn.startswith("s_cmp") or mn.startswith("s_bitcmp"):
        i.kind = "salu"; i.rd = R(0) + R(1)
    elif mn.startswith("s_cbranch") or mn in ("s_branch", "s_barrier", "s_endpgm", "s_setprio", "s_sleep", "s_setpc_b64", "s_call_b64"):
        i.kind = "ctl"
        if "vcc" in mn: i.rd = regs("vcc")
    elif mn.startswith("s_"):
        i.kind = "salu"; i.wr = R(0); i.rd = sum((R(k) for k in range(1, len(parts))), [])
        if "saveexec" in mn: i.wr += regs("exec"); i.rd += regs("exec")
    else:
        raise ValueError("unknown instr " + t)
    return i

def check(lines, name="", verbose=True, init_ok=None):
    ins = [p for p in (parse(l, n) for n, l in enumerate(lines)) if p is not None]
    errs = []
    pos = 0
    lastw = {}
    mfma_c_read = {}
    store_data = {}
    vmq = []
    lgq = []
    smq = []
    pend = {}
    def err(i, msg):
        errs.append(f"[{name}] line {i.lineno}: {i.txt}  <-- {msg}")
    for i in ins:
        def dist(p): return pos - p - 1
        if i.kind == "wait":
            for m in i.mods:
                mm = re.match(r"(vmcnt|lgkmcnt|expcnt)\((\d+)\)", m)
                if not mm: continue
                n = int(mm.group(2))
                if mm.group(1) == "vmcnt":
                    while len(vmq) > n:
                        o = vmq.pop(0)
                        for r in o.wr:
                            if pend.get(r) is o: del pend[r]
                elif mm.group(1) == "lgkmcnt":
                    if smq and n != 0:
                        err(i, "counted lgkmcnt with SMEM outstanding")
                    if n == 0:
                        for o in smq:
                            for r in o.wr:
                                if pend.get(r) is o: del pend[r]
                        smq = []
                    while len(lgq) > n:
                        o = lgq.pop(0)
                        for r in o.wr:
                            if pend.get(r) is o: del pend[r]
        for r in set(i.rd) | set(i.wr):
            if r in pend and not (i.kind == "vm" and i.mn == "buffer_load_dword" and pend[r].mn == "buffer_load_dword" and r not in i.rd):
                err(i, f"reg {r} still pending from: {pend[r].txt}")
        for r in i.rd:
            if r in lastw:
                p, w = lastw[r]
                d = dist(p)
                need = 0
                if w.kind == "valu":
                    if r[0] in "va":
                        if i.kind == "mfma": need = 2
                        if i.mn.startswith("v_permlane"): need = 2
                        if i.mn in ("v_readfirstlane_b32", "v_readlane_b32"): need = 1
                        if w.mn in TRANS and i.kind == "valu" and i.mn not in TRANS: need = max(need, 1)
                        if w.mn in TRANS and i.kind != "valu": need = max(need, 1)
                        if any("dpp" in m or "row_" in m or "quad_perm" in m for m in i.mods): need = max(need, 2)
                    else:
                        if i.kind == "valu": need = 2
                        if i.mn in ("v_readlane_b32",): need = 4
                        if i.kind == "vm": need = 5
                        if i.kind in ("salu", "ctl"): need = 0
                elif w.kind == "mfma":
                    tab = {4: 8, 8: 12}
                    if i.kind == "mfma":
                        if r in i.srcab: need = tab[w.passes]
                        elif r in i.srcc:
                            if i.srcc == w.wr and i.passes == w.passes: need = 0
                            else: need = {4: 6, 8: 10}[w.passes]
                    else: need = tab[w.passes]
                elif w.kind == "salu":
                    if r == ("s", 124) and i.lds: need = 1
                if d < need: err(i, f"RAW {r}: dist {d} < {need} from: {w.txt}")
        for r in i.wr:
            if r in lastw:
                p, w = lastw[r]
                if w.kind == "mfma" and not (i.kind == "mfma" and i.wr == w.wr and i.passes == w.passes):
                    need = {4: 8, 8: 12}[w.passes]
                    if i.kind == "mfma": need = {4: 6, 8: 10}[w.passes]
                    if dist(p) < need: err(i, f"WAW {r}: dist {dist(p)} < {need} after mfma: {w.txt}")
            if r in mfma_c_read and i.kind == "valu":
                p, ps = mfma_c_read[r]
                need = {4: 3, 8: 7}[ps]
                if dist(p) < need: err(i, f"WAR srcC {r}: dist {dist(p)} < {need}")
            if r in store_data:
                need = 2 if i.kind == "valu" else 1
                if dist(store_data[r]) < need: err(i, f"WAR store data {r}")
        for r in i.wr: lastw[r] = (pos, i)
        if i.kind == "mfma":
            for r in i.srcc: mfma_c_read[r] = (pos, i.passes)
        if i.kind == "vm":
            vmq.append(i)
            if len(vmq) > 63: err(i, "vmcnt overflow (>63 outstanding)")
            for r in i.wr: pend[r] = i
            if len(i.data) >= 3:
                for r in i.data: store_data[r] = pos
        if i.kind == "ds":
            lgq.append(i)
            for r in i.wr: pend[r] = i
        if i.kind == "smem":
            smq.append(i)
            for r in i.wr: pend[r] = i
        pos += i.ws
    if verbose:
        for e in errs[:40]: print(e)
        print(f"hazard check {name}: {len(ins)} instrs, {len(errs)} problems")
    return errs

def trace(lines, decisions, maxlen=400000):
    labels = {}
    for n, l in enumerate(lines):
        t = l.split(";")[0].strip()
        if t.endswith(":"): labels[t[:-1]] = n
    dec = {k: list(vv) for k, vv in decisions.items()}
    out = []
    pc = 0
    while pc < len(lines) and len(out) < maxlen:
        l = lines[pc]
        t = l.split(";")[0].strip()
        out.append(l)
        if t.startswith("s_endpgm"): break
        if t.startswith("s_call_b64"):
            ret = pc + 1; pc = labels[t.split(",")[1].strip()]; continue
        if t.startswith("s_setpc_b64"):
            pc = ret; continue
        if t.startswith("s_branch"):
            pc = labels[t.split()[1]]; continue
        if t.startswith("s_cbranch"):
            lab = t.split()[1]
            d = dec.get(lab)
            take = d.pop(0) if d else False
            if take:
                pc = labels[lab]; continue
        pc += 1
    return out
```

```python
import numpy as np
S, M, H, D, F = 2048, 512, 32, 128, 1376
KS3 = 128 + 43
XF_OFF = 0
QF_OFF = 2 << 20
KV_OFF = 18 << 20
AF_OFF = 50 << 20
WS_USED = AF_OFF + 128 * KS3 * 1024
QSCALE = (D ** -0.5) * 1.4426950408889634

def pi(i):
    return (i & ~24) | ((i & 8) << 1) | ((i & 16) >> 1)

def xf_index():
    t16, ks, lane, j = np.meshgrid(np.arange(128), np.arange(16), np.arange(64), np.arange(8), indexing="ij")
    g, tt = lane // 16, lane % 16
    return 16 * t16 + tt, 32 * ks + 8 * g + j
def qk_index(perm):
    t32, s, lane, j = np.meshgrid(np.arange(64), np.arange(8), np.arange(64), np.arange(8), indexing="ij")
    h, idx = lane // 32, lane % 32
    c, e = s // 2, s % 2
    g = 2 * e + h
    d = 32 * c + np.where(j < 4, 4 * g + j, 16 + 4 * g + j - 4)
    tok = 32 * t32 + (pi(idx) if perm else idx)
    return tok, d
def v_index():
    t32, dt, e, lane, j = np.meshgrid(np.arange(64), np.arange(4), np.arange(2), np.arange(64), np.arange(8), indexing="ij")
    h, dd = lane // 32, lane % 32
    g = 2 * e + h
    key = 32 * t32 + np.where(j < 4, 4 * g + j, 16 + 4 * g + j - 4)
    return key, 32 * dt + dd
def af_index():
    t16, c, lane, j = np.meshgrid(np.arange(128), np.arange(KS3), np.arange(64), np.arange(8), indexing="ij")
    g, tt = lane // 16, lane % 16
    e, h = g >> 1, g & 1
    kc = 32 * c + 16 * e + 4 * h + np.where(j < 4, j, 8 + j - 4)
    kh = 32 * c + np.where(j < 4, 4 * g + j, 16 + 4 * g + j - 4)
    return 16 * t16 + tt, np.where(c < 128, kc, kh)
```

```python
import sys, importlib
from ag import *
NAME = "parallel_sum__compressed_kv_cla__glu_gated_reglu__prompt"
def header():
    ref = open("cdna_kernels/" + NAME + ".s.ref").read().split("\n")
    out = []
    for l in ref:
        if l.startswith("; Override launch") : break
        out.append(l)
    return out
def build(gens):
    ks = [g() for g in gens]
    hdr = header() + [x[4] for x in ks]
    return build_file(hdr, [(x[0], x[1], x[2], x[3]) for x in ks])
def all_gens(which="0123"):
    g = []
    if "0" in which:
        import gen_k0; g.append(gen_k0.gen_k0)
    if "1" in which:
        import gen_k1; g.append(gen_k1.gen_k1)
    if "2" in which:
        import gen_k2; g.append(gen_k2.gen_k2)
    if "3" in which:
        import gen_k3; g.append(gen_k3.gen_k3)
    return g
if __name__ == "__main__":
    which = sys.argv[1] if len(sys.argv) > 1 else "0123"
    out = sys.argv[2] if len(sys.argv) > 2 else "cdna_kernels/" + NAME + ".s"
    open(out, "w").write(build(all_gens(which)))
    print("wrote", out)
```

```python
import os
PROFILE = bool(os.environ.get('PROF'))
PROF_OFF = 76 << 20
def v(i, n=1):
    return f"v{i}" if n == 1 else f"v[{i}:{i+n-1}]"
def a(i, n=1):
    return f"a{i}" if n == 1 else f"a[{i}:{i+n-1}]"
def s(i, n=1):
    return f"s{i}" if n == 1 else f"s[{i}:{i+n-1}]"

class K:
    def __init__(self, name):
        self.name = name
        self.L = []
    def __call__(self, line):
        self.L.append("    " + line)
    def label(self, l):
        self.L.append(l + ":")
    def c(self, t):
        self.L.append("    ; " + t)
    def prof_init(self, vreg, sidx):
        import ag
        if not ag.PROFILE: return
        self.pv, self.ps = vreg, sidx
        self(f"v_mov_b32 v{vreg}, 0")
        self(f"v_mbcnt_lo_u32_b32 v{vreg+1}, -1, 0")
        self(f"v_mbcnt_hi_u32_b32 v{vreg+1}, -1, v{vreg+1}")
        self(f"s_mov_b32 s{sidx}, 0")
        self(f"s_mov_b32 s{sidx+1}, s2")
    def stamp(self):
        import ag
        if not ag.PROFILE: return
        t = self.ps + 2
        self(f"s_memrealtime s[{t}:{t+1}]" if os.environ.get("PROF") != "cyc" else f"s_memtime s[{t}:{t+1}]")
        self("s_waitcnt lgkmcnt(0)")
        self(f"v_mov_b32 v{self.pv+2}, s{t}")
        self(f"v_cmp_eq_u32 vcc, s{self.ps}, v{self.pv+1}")
        self("s_nop 1")
        self(f"v_cndmask_b32 v{self.pv}, v{self.pv}, v{self.pv+2}, vcc")
        self(f"s_add_u32 s{self.ps}, s{self.ps}, 1")
    def prof_flush(self, srd_ws, kidx, swave, vtmp):
        import ag
        if not ag.PROFILE: return
        t = self.ps + 2
        self(f"s_lshl_b32 s{t}, s{self.ps+1}, 3")
        self(f"s_add_u32 s{t}, s{t}, s{swave}")
        self(f"s_lshl_b32 s{t}, s{t}, 8")
        self(f"s_add_u32 s{t}, s{t}, {ag.PROF_OFF + kidx*256*8*256}")
        vtmp = self.pv + 2
        self(f"v_lshlrev_b32 v{vtmp}, 2, v{self.pv+1}")
        self(f"buffer_store_dword v{self.pv}, v{vtmp}, s[{srd_ws}:{srd_ws+3}], s{t} offen")
    def srd(self, d, b, nbytes):
        self(f"s_mov_b32 s{d}, s{b}")
        self(f"s_and_b32 s{d+1}, s{b+1}, 0xffff")
        self(f"s_mov_b32 s{d+2}, {nbytes:#x}")
        self(f"s_mov_b32 s{d+3}, 0x00020000")
    def text(self, nvgpr, accum, nsgpr=102):
        n = self.name
        head = [f".globl {n}", ".p2align 8", f".type {n},@function", f"{n}:"]
        return "\n".join(head + self.L) + "\n"
    def desc(self, nfv, accum, nsgpr=102, wgy=False):
        n = self.name
        t = f""".p2align 6
.amdhsa_kernel {n}
  .amdhsa_next_free_vgpr {nfv}
  .amdhsa_next_free_sgpr {nsgpr}
  .amdhsa_accum_offset {accum}
  .amdhsa_group_segment_fixed_size 0
  .amdhsa_kernarg_size 104
  .amdhsa_user_sgpr_count 2
  .amdhsa_user_sgpr_kernarg_segment_ptr 1
  .amdhsa_system_sgpr_workgroup_id_x 1
"""
        if wgy:
            t += "  .amdhsa_system_sgpr_workgroup_id_y 1\n"
        t += ".end_amdhsa_kernel\n"
        return t

def build_file(header_lines, kernels):
    out = []
    out += header_lines
    out.append('.amdgcn_target "amdgcn-amd-amdhsa--gfx950"')
    out.append(".text")
    txt = "\n".join(out) + "\n"
    for k, nfv, accum, nsgpr in kernels:
        txt += k.text(nfv, accum, nsgpr)
    txt += '.section .rodata,"a"\n'
    for k, nfv, accum, nsgpr in kernels:
        txt += k.desc(nfv, accum, nsgpr)
    return txt

def merge(mfmas, streams):
    n = len(mfmas)
    gaps = [[] for _ in range(n)]
    for items, st, en in streams:
        m = len(items)
        if m == 0: continue
        span = en - st
        for j, it in enumerate(items):
            g = st + (j * span) // m
            assert 0 <= g < n, (g, n)
            if isinstance(it, (list, tuple)): gaps[g].extend(it)
            else: gaps[g].append(it)
    out = []
    for g in range(n):
        out.append(mfmas[g])
        out.extend(gaps[g])
    return out

def _cls(l):
    m = l.split()[0]
    if m.startswith(("ds_", "buffer_")): return 0
    if m.startswith("s_"): return 1
    return 2
def _cost(l):
    m = l.split()[0]
    if m in ("v_exp_f32", "v_rcp_f32", "v_log_f32", "v_rsq_f32", "v_sqrt_f32"): return 2
    return 1
def merge2(spine, streams, fixed=None):
    n = len(spine)
    gaps = [[[], [], []] for _ in range(n)]
    for items, st, en in streams:
        if not items: continue
        its = [list(it) if isinstance(it, (list, tuple)) else [it] for it in items]
        costs = [sum(_cost(l) for l in it) for it in its]
        tot = sum(costs); span = en - st; cum = 0
        for it, c in zip(its, costs):
            g = st + min(span - 1, int(cum * span / tot))
            cum += c
            cl = min(_cls(l) for l in it)
            gaps[g][cl].extend(it)
    out = []
    for g in range(n):
        sp = spine[g]
        out.extend(sp if isinstance(sp, (list, tuple)) else [sp])
        if fixed and g in fixed: out.extend(fixed[g])
        for cl in range(3): out.extend(gaps[g][cl])
    return out

def resolve_waits(lines):
    out = []; vm = []
    for l in lines:
        t = l.strip()
        if t.startswith("WAITVM"):
            tags = t.split()[1].split(",")
            last = max((i for i, g in enumerate(vm) if g in tags), default=None)
            assert last is not None, t
            n = len(vm) - 1 - last
            out.append(f"    s_waitcnt vmcnt({min(n, 63)})")
            continue
        if t.startswith("buffer_"):
            vm.append(t.split("@")[1].strip() if "@" in t else None)
        out.append(l)
    return out
```

```python
from ag import *
from layout import *
def bf16_round(k, dst, src, tmp):
    k(f"v_cvt_pk_bf16_f32 v{tmp}, v{src}, v{src}")
    k(f"v_lshlrev_b32 v{dst}, 16, v{tmp}")
def red8(k, r, t):
    k("s_nop 1")
    k(f"v_add_f32_dpp v{t}, v{r}, v{r} quad_perm:[1,0,3,2] row_mask:0xf bank_mask:0xf")
    k("s_nop 1")
    k(f"v_add_f32_dpp v{r}, v{t}, v{t} quad_perm:[2,3,0,1] row_mask:0xf bank_mask:0xf")
    k("s_nop 1")
    k(f"v_add_f32_dpp v{t}, v{r}, v{r} row_half_mirror row_mask:0xf bank_mask:0xf")
    k(f"v_mov_b32 v{r}, v{t}")

def ln_body(k, s_x, s_ws, s_task, vb, stmp, store_mods=""):
    L = vb
    vo_in, vo_out, t0, t1, sm, sq = vb+1, vb+2, vb+3, vb+4, vb+5, vb+6
    raw = vb + 8
    raw += raw % 2
    f = raw + 32
    k(f"v_and_b32 v{t0}, 7, v{L}")
    k(f"v_lshrrev_b32 v{t1}, 3, v{L}")
    k(f"v_lshlrev_b32 v{vo_in}, 10, v{t1}")
    k(f"v_lshl_add_u32 v{vo_in}, v{t0}, 4, v{vo_in}")
    k(f"s_lshl_b32 s{stmp}, s{s_task}, 13")
    for i in range(8):
        k(f"buffer_load_dwordx4 {v(raw+4*i,4)}, v{vo_in}, {s(s_x,4)}, s{stmp} offen offset:{i*128} nt")
    k(f"v_lshlrev_b32 v{vo_out}, 8, v{t0}")
    k(f"v_lshl_add_u32 v{vo_out}, v{t1}, 4, v{vo_out}")
    k(f"s_lshr_b32 s{stmp+1}, s{s_task}, 1")
    k(f"s_lshl_b32 s{stmp+1}, s{stmp+1}, 14")
    k(f"s_and_b32 s{stmp+2}, s{s_task}, 1")
    k(f"s_lshl_b32 s{stmp+2}, s{stmp+2}, 7")
    k(f"s_add_u32 s{stmp+1}, s{stmp+1}, s{stmp+2}")
    if XF_OFF: k(f"s_add_u32 s{stmp+1}, s{stmp+1}, {XF_OFF}")
    k(f"v_mov_b32 v{sm}, 0")
    k(f"v_mov_b32 v{sq}, 0")
    for i in range(8):
        k(f"s_waitcnt vmcnt({7-i})")
        for r in range(4):
            x = raw + 4*i + r
            k(f"v_lshlrev_b32 v{f+8*i+2*r}, 16, v{x}")
            k(f"v_and_b32 v{f+8*i+2*r+1}, 0xffff0000, v{x}")
        for r in range(0, 8, 2):
            k(f"v_add_f32 v{sm}, v{sm}, v{f+8*i+r}")
            k(f"v_add_f32 v{sq}, v{sq}, v{f+8*i+r+1}")
    k(f"v_add_f32 v{sm}, v{sm}, v{sq}")
    if hasattr(k, "pv"): k.stamp()
    red8(k, sm, t0)
    k(f"v_mul_f32 v{sm}, {1.0/512!r}, v{sm}")
    k(f"v_mov_b32 v{sq}, 0")
    k(f"v_mov_b32 v{t1}, 0")
    for i in range(0, 64, 2):
        k(f"v_sub_f32 v{raw}, v{f+i}, v{sm}")
        k(f"v_sub_f32 v{raw+1}, v{f+i+1}, v{sm}")
        k(f"v_fmac_f32 v{sq}, v{raw}, v{raw}")
        k(f"v_fmac_f32 v{t1}, v{raw+1}, v{raw+1}")
    k(f"v_add_f32 v{sq}, v{sq}, v{t1}")
    red8(k, sq, t0)
    k(f"v_mul_f32 v{sq}, {1.0/512!r}, v{sq}")
    bf16_round(k, sq, sq, t0)
    k(f"v_add_f32 v{sq}, 0x3727c5ac, v{sq}")
    bf16_round(k, sq, sq, t0)
    k(f"v_sqrt_f32 v{sq}, v{sq}")
    k("s_nop 0")
    bf16_round(k, sq, sq, t0)
    k(f"v_rcp_f32 v{sq}, v{sq}")
    bf16_round(k, sm, sm, t0)
    for i in range(32):
        a0, a1 = f+2*i, f+2*i+1
        k(f"v_sub_f32 v{a0}, v{a0}, v{sm}")
        k(f"v_sub_f32 v{a1}, v{a1}, v{sm}")
        k(f"v_cvt_pk_bf16_f32 v{t0}, v{a0}, v{a1}")
        k(f"v_lshlrev_b32 v{a0}, 16, v{t0}")
        k(f"v_and_b32 v{a1}, 0xffff0000, v{t0}")
        k(f"v_mul_f32 v{a0}, v{a0}, v{sq}")
        k(f"v_mul_f32 v{a1}, v{a1}, v{sq}")
        k(f"v_cvt_pk_bf16_f32 v{raw+i}, v{a0}, v{a1}")
        if i % 4 == 3:
            ii = i // 4
            if ii % 2 == 0 and ii > 0:
                k(f"s_add_u32 s{stmp+1}, s{stmp+1}, 4096")
            k(f"buffer_store_dwordx4 {v(raw+4*ii,4)}, v{vo_out}, {s(s_ws,4)}, s{stmp+1} offen offset:{(ii%2)*2048}{store_mods}")

def gen_k0(name="ln"):
    k = K(name + "_kernel")
    k("s_cmp_ge_u32 s2, 256")
    k(f"s_cbranch_scc1 L_{name}_end")
    k("s_load_dwordx4 s[4:7], s[0:1], 0")
    k("s_load_dwordx2 s[24:25], s[0:1], 96")
    k.prof_init(120, 40)
    k.stamp()
    k("v_lshrrev_b32 v1, 6, v0")
    k("v_and_b32 v0, 63, v0")
    k("v_readfirstlane_b32 s3, v1")
    k("s_waitcnt lgkmcnt(0)")
    k.srd(12, 24, WS_USED)
    k("s_cmp_eq_u32 s3, 0")
    k(f"s_cbranch_scc0 L_{name}_ckv")
    k.srd(8, 4, S*M*2)
    ln_body(k, 8, 12, 2, 0, 16)
    k(f"s_branch L_{name}_fin")
    k.label(f"L_{name}_ckv")
    k.srd(8, 6, S*M*2)
    k("v_and_b32 v3, 7, v0")
    k("v_lshrrev_b32 v4, 3, v0")
    k("v_lshlrev_b32 v1, 10, v4")
    k("v_lshl_add_u32 v1, v3, 4, v1")
    k("s_lshl_b32 s16, s2, 13")
    for i in range(8):
        k(f"buffer_load_dwordx4 {v(8+4*i,4)}, v1, s[8:11], s16 offen offset:{i*128} nt")
    k("v_lshlrev_b32 v2, 8, v3")
    k("v_lshl_add_u32 v2, v4, 4, v2")
    k("s_lshr_b32 s17, s2, 1")
    k("s_lshl_b32 s17, s17, 14")
    k("s_and_b32 s18, s2, 1")
    k("s_lshl_b32 s18, s18, 7")
    k("s_add_u32 s17, s17, s18")
    k(f"s_add_u32 s17, s17, {CF_OFF}")
    for i in range(8):
        if i % 2 == 0 and i: k("s_add_u32 s17, s17, 4096")
        k(f"s_waitcnt vmcnt(7)")
        k(f"buffer_store_dwordx4 {v(8+4*i,4)}, v2, s[12:15], s17 offen offset:{(i%2)*2048}")
    k.label(f"L_{name}_fin")
    import os
    if os.environ.get("PROF"): k("s_waitcnt vmcnt(0)")
    k.stamp()
    k.prof_flush(12, 0, 3, 0)
    k.label(f"L_{name}_end")
    k("s_endpgm")
    return k, 128, 128, 48, f"; @launch kernel={name}_kernel grid=(256,1,1) block=(128,1,1) lds=0"
if __name__ == "__main__":
    import hz
    k = gen_k0()[0]
    hz.check(hz.trace(k.L, {}), "k0")
    hz.check(hz.trace(k.L, {"L_ln_ckv": [True]}), "k0b")
```

```python
from ag import *
from layout import *
from gen_k0 import ln_body
import struct, os
def f32hex(x): return "0x%08x" % struct.unpack("<I", struct.pack("<f", x))[0]
NT = os.environ.get("K1_NT", " nt")
NTA = os.environ.get("K1_NTA", " nt")
STM = os.environ.get("K1_STMOD", "")
FUSE_LN = bool(os.environ.get("K1_LN"))
V_TR = 2
V_DMA = 6
V_ROWL, V_COLP = 10, 11
V_ST = 12
V_STH = 13
V_ARAW = 14
V_B = 32
V_ACC = 96
V_ACCG = 160
V_PK = 224
S_WS = 8
S_PF = 12
S_WQ, S_WG, S_WU = 16, 20, 24
S_A = 28
S_PITCH, S_PFBASE, S_PFIDX, S_N, S_NP2, S_P0, S_Q0 = 32, 33, 34, 35, 36, 37, 38
S_W = 39
S_LDSW = 40
S_SLOT = 41
S_CUR = 42
S_AOFF = 43
S_ST = 44
S_T = 48
S_SCALE = 56
S_RB = 57
S_OUTB = 58
S_C1, S_C2, S_C3 = 60, 61, 62
S_KOFF = 63
S_STP = 80
S_DBG = 84
OOB = 0x7ff00000

def acc(nt, rt, base=V_ACC): return base + (nt * 4 + rt) * 4
def afrag(rt, ks): return (rt * 16 + ks) * 4

def desc_update(typ):
    L = []
    if typ == "kv":
        L += [[f"s_add_u32 s{S_T}, s{S_Q0}, s{S_PFIDX}",
              f"s_lshl_b32 s{S_T}, s{S_T}, 7"],
              f"s_add_u32 s{S_T}, s{S_T}, s{S_KOFF}",
              [f"s_cmp_lt_u32 s{S_PFIDX}, s{S_N}",
              f"s_cselect_b32 s{S_PFBASE}, s{S_T}, {OOB:#x}"]]
        return L
    L += [
        [f"s_lshr_b32 s{S_T}, s{S_PFIDX}, 1",
        f"s_add_u32 s{S_T}, s{S_T}, s{S_P0}"],
        f"s_lshl_b32 s{S_T}, s{S_T}, 7",
        [f"s_bitcmp1_b32 s{S_PFIDX}, 0",
        f"s_cselect_b32 s{S_T+2}, s{S_WU}, s{S_WG}",
        f"s_cselect_b32 s{S_T+3}, s{S_WU+1}, s{S_WG+1}"],
        [f"s_sub_u32 s{S_T+1}, s{S_PFIDX}, s{S_NP2}",
        f"s_add_u32 s{S_T+1}, s{S_T+1}, s{S_Q0}"],
        f"s_lshl_b32 s{S_T+1}, s{S_T+1}, 7",
        [f"s_cmp_lt_u32 s{S_PFIDX}, s{S_NP2}",
        f"s_cselect_b32 s{S_T}, s{S_T}, s{S_T+1}",
        f"s_cselect_b32 s{S_PF}, s{S_T+2}, s{S_WQ}"],
        [f"s_cmp_lt_u32 s{S_PFIDX}, s{S_NP2}",
        f"s_cselect_b32 s{S_PF+1}, s{S_T+3}, s{S_WQ+1}",
        f"s_cselect_b32 s{S_PF+2}, s{S_WG+2}, s{S_WQ+2}"],
        [f"s_cmp_lt_u32 s{S_PFIDX}, s{S_NP2}",
        f"s_cselect_b32 s{S_PITCH}, s{S_KOFF}, {H*D*2}"],
        [f"s_lshl_b32 s{S_T+1}, s{S_W}, 6",
        f"s_mul_i32 s{S_T+1}, s{S_T+1}, s{S_PITCH}"],
        f"s_add_u32 s{S_T}, s{S_T}, s{S_T+1}",
        [f"s_cmp_lt_u32 s{S_PFIDX}, s{S_N}",
        f"s_cselect_b32 s{S_PFBASE}, s{S_T}, {OOB:#x}"],
    ]
    L += pitch_consts()
    return L
def pitch_consts():
    return [
        [f"s_lshl_b32 s{S_C1}, s{S_PITCH}, 4",
        f"s_lshl_b32 s{S_C2}, s{S_PITCH}, 2"],
        [f"s_add_u32 s{S_C3}, s{S_C1}, s{S_C2}",
        f"s_sub_u32 s{S_C1}, s{S_C1}, 1024"],
        [f"s_sub_u32 s{S_C2}, s{S_C2}, 2048",
        f"s_sub_u32 s{S_C3}, s{S_C3}, 3072"],
        [f"v_mad_u32_u24 v{V_DMA}, v{V_ROWL}, s{S_PITCH}, v{V_COLP}",
        f"v_add_u32 v{V_DMA+1}, s{S_C1}, v{V_DMA}"],
        [f"v_add_u32 v{V_DMA+2}, s{S_C2}, v{V_DMA}",
        f"v_add_u32 v{V_DMA+3}, s{S_C3}, v{V_DMA}"],
    ]
def flat(items):
    out = []
    for it in items:
        if isinstance(it, (list, tuple)): out += list(it)
        else: out.append(it)
    return out

def dma_group(khalf, kk, tag=""):
    rows = 256 * khalf + 32 * kk
    setup = [[f"s_mul_i32 s{S_T+4}, s{S_PITCH}, {rows}" if rows else f"s_mov_b32 s{S_T+4}, 0",
             f"s_add_u32 m0, s{S_SLOT}, {khalf*32768 + kk*4096}"],
             f"s_add_u32 s{S_T+4}, s{S_T+4}, s{S_PFBASE}"]
    d = [f"buffer_load_dwordx4 v{V_DMA+i}, {s(S_PF,4)}, s{S_T+4} offen offset:{1024*i}{NT} lds{tag}" for i in range(4)]
    return setup, d

def tr_reads(khalf, nt, buf):
    return [f"ds_read_b64_tr_b16 {v(V_B + buf*32 + ks*4 + j*2, 2)}, v{V_TR+nt} offset:{khalf*32768 + ks*4096 + j*2048}" for ks in range(8) for j in range(2)]

def mfma_block(typ, khalf, nt, accbase):
    L = []
    buf = nt % 2
    for rt in range(4):
        for ks in range(8):
            d = v(acc(nt, rt, accbase), 4)
            c = "0" if (khalf == 0 and ks == 0) else d
            w = v(V_B + buf*32 + ks*4, 4)
            t = a(afrag(rt, 8*khalf + ks), 4)
            if typ == "V": L.append(f"v_mfma_f32_16x16x32_bf16 {d}, {t}, {w}, {c}")
            else: L.append(f"v_mfma_f32_16x16x32_bf16 {d}, {w}, {t}, {c}")
    return L

def epi_pair(typ, t0, t1, g0, g1, pk, voff, sbase, imm):
    L = []
    srcs = [t0 + r for r in range(4)] + [t1 + r for r in range(4)]
    if typ == "Q":
        for r in srcs: L.append(f"v_mul_f32 v{r}, s{S_SCALE}, v{r}")
    if typ == "U":
        gs = [g0 + r for r in range(4)] + [g1 + r for r in range(4)]
        for r, g in zip(srcs, gs): L.append(f"v_mul_f32 v{r}, v{g}, v{r}")
    for i in range(4):
        L.append(f"v_cvt_pk_bf16_f32 v{pk+i}, v{srcs[2*i]}, v{srcs[2*i+1]}")
    st = f"buffer_store_dwordx4 {v(pk,4)}, v{voff}, {s(S_WS,4)}, s{sbase} offen offset:{imm}{STM}"
    return L, st
def pair_epi(typ, idx, pk, sb):
    if typ in ("Q", "K", "U"):
        pi_, rt = idx // 4, idx % 4
        t0, t1 = acc(2*pi_, rt), acc(2*pi_+1, rt)
        g0, g1 = acc(2*pi_, rt, V_ACCG), acc(2*pi_+1, rt, V_ACCG)
        if typ == "U": return epi_pair(typ, t0, t1, g0, g1, pk, V_STH, sb + rt, pi_*1024)
        rto = 256 if typ == "Q" else 128
        return epi_pair(typ, t0, t1, 0, 0, pk, V_ST, sb + rt//2, pi_*2048 + (rt%2)*rto)
    nt, rp = idx // 2, idx % 2
    return epi_pair(typ, acc(nt, 2*rp), acc(nt, 2*rp+1), 0, 0, pk, V_ST, sb + rp, (nt%2)*256 + (nt//2)*2048)
def two_pairs(typ, i0, i1, sb, g0=2):
    st = []
    for n, idx in enumerate((i0, i1)):
        L, s_ = pair_epi(typ, idx, V_PK + 4*(idx % 4), sb)
        a0 = g0 + n*14
        st.append((L, a0, a0 + 13))
        st.append(([s_], a0 + 14, a0 + 15))
    return st
def carried(typ):
    return {"Q": [4, 5, 6, 7], "K": [4, 5, 6, 7], "U": [4, 5, 6, 7], "V": [6, 7], "G": []}[typ]
def flush(k, typ):
    k("s_nop 7")
    for idx in carried(typ):
        L, s_ = pair_epi(typ, idx, V_PK + 4*(idx % 4), S_ST)
        for l in L: k(l)
        k(s_)

def a_loads(wgtype, khalf, rt):
    L = []
    for i in range(8):
        ks = khalf*8 + i
        pre = [f"s_add_u32 s{S_T+7}, s{S_AOFF}, {rt*16384 + (ks//4)*4096}"] if i % 4 == 0 else []
        L.append(pre + [f"buffer_load_dwordx4 {a(afrag(rt,ks),4)}, v{V_STH}, {s(S_WS,4)}, s{S_T+7} offen offset:{(ks%4)*1024}{' sc1' if FUSE_LN else ''} ; @A{khalf}{rt}"])
    return L

def chunk_body(k, typ, wgtype, prev, first=False):
    accbase = V_ACCG if typ == "G" else V_ACC
    sb = []
    if typ in ("K", "V", "Q"):
        tstr = 8192 if typ == "Q" else 16384
        sb += [f"s_add_u32 s{S_T+5}, s{S_Q0}, s{S_CUR}"]
        if wgtype == "qgu": sb += [f"s_sub_u32 s{S_T+5}, s{S_T+5}, s{S_NP2}"]
        sb += [f"s_lshr_b32 s{S_T+6}, s{S_T+5}, 1",
               f"s_mul_i32 s{S_T+6}, s{S_T+6}, {64*tstr}",
               f"s_and_b32 s{S_T+5}, s{S_T+5}, 1",
               f"s_lshl_b32 s{S_T+5}, s{S_T+5}, 12",
               f"s_add_u32 s{S_T+6}, s{S_T+6}, s{S_T+5}",
               f"s_add_u32 s{S_ST}, s{S_T+6}, s{S_OUTB}",
               f"s_add_u32 s{S_ST+1}, s{S_ST}, {tstr}"]
    if typ == "U":
        sb += [f"s_lshr_b32 s{S_T+5}, s{S_CUR}, 1",
               f"s_add_u32 s{S_T+5}, s{S_T+5}, s{S_P0}",
               f"s_lshl_b32 s{S_T+5}, s{S_T+5}, 11",
               f"s_add_u32 s{S_ST}, s{S_T+5}, s{S_OUTB+1}"]
        for rt in range(1, 4):
            sb += [f"s_add_u32 s{S_ST+rt}, s{S_ST}, {rt*KS3*1024}"]
    for b in range(8):
        khalf, nt = b // 4, b % 4
        streams = []
        spine = mfma_block(typ, khalf, nt, accbase)
        fixed = {}
        spine[0] = ["s_waitcnt lgkmcnt(0)", spine[0]]
        rs = 0
        if nt == 3:
            fixed[0] = [f"s_waitcnt vmcnt(16)", "s_barrier"]
            if first: fixed[0] = [f"WAITVM {'u1' if b == 3 else 'u2'}", "s_barrier"]
        if first and nt == 0:
            for rt in range(4):
                w_ = f"WAITVM A{khalf}{rt}"
                spine[8*rt] = ([w_] + spine[8*rt]) if isinstance(spine[8*rt], list) else [w_, spine[8*rt]]
        if b < 7:
            nb = b + 1
            rd = tr_reads(nb // 4, nb % 4, nb % 2)
        else:
            rd = tr_reads(0, 0, 0)
        streams.append((rd, 1, 25))
        if b == 6:
            streams.append(([f"v_xor_b32 v{V_TR+i}, 0x10000, v{V_TR+i}" for i in range(4)], 26, 30))
        if b == 3:
            du = [f"s_add_u32 s{S_PFIDX}, s{S_PFIDX}, 1"] + desc_update(wgtype)
            streams.append((du, 1, 19))
        grp = {3: (0,0), 4: (0,0), 5: (0,1), 6: (0,1), 7: (1,0), 0: (1,0), 1: (1,1), 2: (1,1)}[b]
        su, dd = dma_group(*grp)
        if first and b == 0:
            streams.append((a_loads(wgtype, 1, 1) + a_loads(wgtype, 1, 2) + a_loads(wgtype, 1, 3), 1, 31))
        elif first and b == 1:
            du = [f"s_mov_b32 s{S_PFIDX}, 1"] + desc_update(wgtype) + [f"s_xor_b32 s{S_SLOT}, s{S_SLOT}, 0x10000"]
            streams.append((du, 0, 12))
            for kk in range(2):
                su2, dd2 = dma_group(0, kk, " ; @u2")
                streams.append(([flat(su2) + dd2[:1]] + dd2[1:], 13 + 9*kk, 21 + 9*kk))
        elif first and b == 2:
            for kk in range(2):
                su2, dd2 = dma_group(1, kk, " ; @u3")
                streams.append(([flat(su2) + dd2[:1]] + dd2[1:], 2 + 13*kk, 14 + 13*kk))
        elif b % 2 == 1:
            streams.append((su, 20, 23))
            streams.append((dd[:2], 24, 31))
        else:
            streams.append((dd[2:], 8, 24))
        if b == 2:
            streams.append(([f"s_xor_b32 s{S_SLOT}, s{S_SLOT}, 0x10000"], 30, 31))
            streams.append((sb, 1, 20))
        if prev and b in (0, 1):
            c = carried(prev)
            if len(c) == 4: streams += two_pairs(prev, c[2*b], c[2*b+1], S_ST, 3 if b == 0 else 2)
            elif len(c) == 2 and b == 0: streams += two_pairs(prev, c[0], c[1], S_ST, 3)
        if typ in ("Q", "K", "U") and b in (6, 7):
            streams += two_pairs(typ, 2*(b-6), 2*(b-6)+1, S_ST, 3)
        if typ == "V" and b >= 5:
            streams += two_pairs(typ, 2*(nt-1), 2*(nt-1)+1, S_ST, 3)
        if typ == "G" and b >= 5:
            e = [f"v_max_f32 v{acc(nt-1, rt, V_ACCG)+r}, 0, v{acc(nt-1, rt, V_ACCG)+r}" for rt in range(4) for r in range(4)]
            streams.append((e, 4, 30))
        if typ == "U" and b == 0:
            e = [f"v_max_f32 v{acc(3, rt, V_ACCG)+r}, 0, v{acc(3, rt, V_ACCG)+r}" for rt in range(4) for r in range(4)]
            streams.append((e, 4, 30))
        if first:
            pass
        for l in merge2(spine, streams, fixed): k(l)
    k.stamp()
    k(f"s_add_u32 s{S_CUR}, s{S_CUR}, 1")

def gen_k1(name="proj"):
    k = K(name + "_kernel")
    E = f"L_{name}_end"
    k("s_cmp_ge_u32 s2, 256")
    k(f"s_cbranch_scc1 {E}")
    k("s_load_dwordx4 s[88:91], s[0:1], 0")
    k("s_load_dwordx2 s[66:67], s[0:1], 16")
    k("s_load_dwordx4 s[68:71], s[0:1], 24")
    k("s_load_dwordx4 s[72:75], s[0:1], 56")
    k("s_load_dwordx4 s[76:79], s[0:1], 88")
    k.prof_init(250, 92)
    k.stamp()
    k("v_lshrrev_b32 v1, 6, v0")
    k("v_and_b32 v0, 63, v0")
    k(f"v_readfirstlane_b32 s{S_W}, v1")
    k("v_lshrrev_b32 v15, 3, v0")
    k("v_and_b32 v16, 3, v15")
    k("v_lshrrev_b32 v17, 2, v15")
    k(f"v_lshl_add_u32 v{V_ROWL}, v17, 3, v16")
    k("v_and_b32 v16, 7, v0")
    k("v_and_b32 v17, 6, v15")
    k("v_xor_b32 v16, v16, v17")
    k(f"v_lshlrev_b32 v{V_COLP}, 4, v16")
    k("v_lshrrev_b32 v15, 4, v0")
    k("v_and_b32 v16, 15, v0")
    k(f"v_lshlrev_b32 v{V_STH}, 4, v0")
    k(f"v_lshlrev_b32 v{V_ARAW}, 10, v16")
    k(f"v_lshl_add_u32 v{V_ARAW}, v15, 4, v{V_ARAW}")
    k("s_and_b32 s3, s2, 7")
    k("s_lshr_b32 s4, s2, 3")
    k("s_and_b32 s5, s3, 1")
    k("s_lshl_b32 s5, s5, 2")
    k("s_and_b32 s6, s4, 3")
    k(f"s_add_u32 s{S_RB}, s5, s6")
    k("s_bfe_u32 s5, s3, 0x10001")
    k("s_lshl_b32 s5, s5, 3")
    k("s_lshr_b32 s6, s4, 2")
    k("s_add_u32 s7, s5, s6")
    k(f"s_lshl_b32 s{S_SLOT}, s{S_W}, 13")
    k(f"s_mov_b32 s{S_CUR}, 0")
    k(f"s_mov_b32 s{S_PFIDX}, 0")
    k(f"s_lshl_b32 s5, s{S_RB}, 18")
    k(f"s_lshl_b32 s6, s{S_W}, 16")
    k(f"s_add_u32 s{S_AOFF}, s5, s6")
    def late_setup():
        k(f"v_lshlrev_b32 v{V_ST}, 9, v15")
        k(f"v_lshl_add_u32 v{V_ST}, v16, 4, v{V_ST}")
        k("v_and_b32 v17, 8, v16")
        k(f"v_lshl_add_u32 v20, v17, 4, v{V_ST}")
        k("v_lshrrev_b32 v15, 5, v0")
        k("v_bfe_u32 v16, v0, 2, 3")
        k("v_and_b32 v17, 3, v0")
        k("v_lshlrev_b32 v18, 10, v15")
        k("v_lshl_add_u32 v18, v16, 7, v18")
        k("v_lshl_add_u32 v18, v17, 3, v18")
        k("v_lshrrev_b32 v19, 1, v16")
        k("v_lshl_add_u32 v18, v19, 5, v18")
        for nt in range(4): k(f"v_xor_b32 v{V_TR+nt}, {nt*32}, v18")
        k(f"s_mov_b32 s{S_SCALE}, {f32hex(QSCALE)}")
        for i in range(4): k(f"s_mov_b32 s{S_ST+i}, {OOB:#x}")
    def first(typ, wgtype):
        kk_ = K("tmp")
        if hasattr(k, "pv"): kk_.pv, kk_.ps = k.pv, k.ps
        def unit(kh):
            for kk in range(2):
                su, dd = dma_group(kh, kk, f" ; @u{kh}")
                for l in flat(su) + dd: kk_(l)
        unit(0)
        for rt in range(4):
            for l in flat(a_loads(wgtype, 0, rt)): kk_(l)
        unit(1)
        for l in flat(a_loads(wgtype, 1, 0)): kk_(l)
        save, k.L = k.L, kk_.L
        late_setup()
        if typ == "K": k(f"v_mov_b32 v{V_ST}, v20")
        k.L = save
        kk_("WAITVM u0")
        kk_("s_barrier")
        kk_.stamp()
        for l in tr_reads(0, 0, 0): kk_(l)
        chunk_body(kk_, typ, wgtype, None, first=True)
        k.L += resolve_waits(kk_.L)
    k("s_cmp_ge_u32 s3, 4")
    k(f"s_cbranch_scc1 L_{name}_qgu")
    k("s_and_b32 s5, s7, 7")
    k(f"s_lshl_b32 s{S_Q0}, s5, 3")
    k(f"s_mov_b32 s{S_N}, 8")
    k(f"s_mov_b32 s{S_NP2}, 0")
    k(f"s_mov_b32 s{S_PITCH}, {H*D*2}")
    k(f"s_mul_i32 s{S_KOFF}, s{S_W}, {64*H*D*2}")
    for l in flat(pitch_consts()): k(l)
    for l in flat(desc_update("kv")): k(l)
    k("s_waitcnt lgkmcnt(0)")
    k.stamp()
    k("s_cmp_ge_u32 s7, 8")
    k("s_cselect_b32 s64, s70, s68")
    k("s_cselect_b32 s65, s71, s69")
    k.srd(S_PF, 64, M*H*D*2)
    k.srd(S_WS, 78, WS_USED)
    k(f"s_add_u32 s{S_AOFF}, s{S_AOFF}, {CF_OFF}")
    k(f"s_lshl_b32 s5, s{S_RB}, 3")
    k(f"s_lshl_b32 s6, s{S_W}, 1")
    k("s_add_u32 s5, s5, s6")
    k("s_lshl_b32 s5, s5, 14")
    k(f"s_add_u32 s{S_OUTB}, s5, {KV_OFF}")
    k("s_cmp_ge_u32 s7, 8")
    k(f"s_cbranch_scc1 L_{name}_v")
    first("K", "kv")
    k.label(f"L_{name}_kloop")
    chunk_body(k, "K", "kv", "K")
    k(f"s_cmp_lt_u32 s{S_CUR}, s{S_N}")
    k(f"s_cbranch_scc1 L_{name}_kloop")
    flush(k, "K")
    k(f"s_branch {E}f")
    k.label(f"L_{name}_v")
    k(f"s_add_u32 s{S_OUTB}, s{S_OUTB}, 8192")
    first("V", "kv")
    k.label(f"L_{name}_vloop")
    chunk_body(k, "V", "kv", "V")
    k(f"s_cmp_lt_u32 s{S_CUR}, s{S_N}")
    k(f"s_cbranch_scc1 L_{name}_vloop")
    flush(k, "V")
    k(f"s_branch {E}f")
    k.label(f"L_{name}_qgu")
    k(f"s_mov_b32 s{S_KOFF}, {F*2}")
    k(f"s_mul_i32 s{S_P0}, s7, 3")
    k(f"s_sub_u32 s5, s7, 8")
    k(f"s_min_u32 s6, s5, 4")
    k(f"s_mul_i32 s4, s5, 6")
    k(f"s_add_u32 s4, s4, s6")
    k(f"s_add_u32 s4, s4, 12")
    k(f"s_cmp_lt_u32 s5, 4")
    k(f"s_cselect_b32 s6, 7, 6")
    k(f"s_cmp_lt_u32 s7, 8")
    k(f"s_cselect_b32 s{S_Q0}, s7, s4")
    k(f"s_cselect_b32 s{S_N}, 7, s6")
    k(f"s_cselect_b32 s{S_NP2}, 6, 0")
    k(f"s_cmp_eq_u32 s7, 7")
    k(f"s_cselect_b32 s{S_NP2}, 2, s{S_NP2}")
    k(f"s_lshl_b32 s5, s{S_RB}, 3")
    k(f"s_lshl_b32 s6, s{S_W}, 1")
    k("s_add_u32 s5, s5, s6")
    k("s_lshl_b32 s6, s5, 13")
    k(f"s_add_u32 s{S_OUTB}, s6, {QF_OFF}")
    k(f"s_mul_i32 s6, s5, {2*KS3*1024}")
    k(f"s_add_u32 s{S_OUTB+1}, s6, {AF_OFF + 128*1024}")
    k("s_waitcnt lgkmcnt(0)")
    k.srd(S_WS, 78, WS_USED)
    k.srd(S_WQ, 66, M*H*D*2)
    k.srd(S_WG, 72, M*F*2)
    k.srd(S_WU, 74, M*F*2)
    k.srd(S_PF, 66, M*H*D*2)
    if XF_OFF: k(f"s_add_u32 s{S_AOFF}, s{S_AOFF}, {XF_OFF}")
    for l in flat(desc_update("qgu")): k(l)
    k(f"s_cmp_eq_u32 s{S_NP2}, 0")
    k(f"s_cbranch_scc1 L_{name}_qfirst")
    first("G", "qgu")
    k(f"s_branch L_{name}_uentry")
    k.label(f"L_{name}_guloop")
    chunk_body(k, "G", "qgu", "U")
    k.label(f"L_{name}_uentry")
    chunk_body(k, "U", "qgu", None)
    k(f"s_cmp_lt_u32 s{S_CUR}, s{S_NP2}")
    k(f"s_cbranch_scc1 L_{name}_guloop")
    flush(k, "U")
    for i in range(2): k(f"s_mov_b32 s{S_ST+i}, {OOB:#x}")
    k(f"s_branch L_{name}_qloop")
    k.label(f"L_{name}_qfirst")
    first("Q", "qgu")
    k.label(f"L_{name}_qloop")
    chunk_body(k, "Q", "qgu", "Q")
    k(f"s_cmp_lt_u32 s{S_CUR}, s{S_N}")
    k(f"s_cbranch_scc1 L_{name}_qloop")
    flush(k, "Q")
    k.label(E + "f")
    if os.environ.get("PROF"): k("s_waitcnt vmcnt(0)")
    k.stamp()
    k.prof_flush(S_WS, 1, S_W, 0)
    k.label(E)
    k("s_endpgm")
    return k, 512, 256, 100, f"; @launch kernel={name}_kernel grid=(256,1,1) block=(256,1,1) lds=131072"

if __name__ == "__main__":
    import hz
    k = gen_k1()[0]
    hz.check(hz.trace(k.L, {"L_proj_kloop": [True, True]}), "k1-K")
    hz.check(hz.trace(k.L, {"L_proj_v": [True], "L_proj_vloop": [True, True]}), "k1-V")
    hz.check(hz.trace(k.L, {"L_proj_qgu": [True], "L_proj_guloop": [True], "L_proj_qloop": [True]}), "k1-GUQ")
    hz.check(hz.trace(k.L, {"L_proj_qgu": [True], "L_proj_qfirst": [True], "L_proj_qloop": [True, True]}), "k1-Q")
```

```python
from ag import *
from layout import *
import os
TOUCH = not os.environ.get("K2_NOTOUCH")
A_K, A_V = 192, 224
V_E = 64
class T:
    def __init__(s_, O, Q, NM, L, THR, S, P): s_.O, s_.Q, s_.NM, s_.L, s_.THR, s_.S, s_.P = O, Q, NM, L, THR, S, P
TL = {
  "a": T(("a", 0),   ("a", 128), 96,  16, 19, 32, 80),
  "b": T(("a", 64),  ("a", 160), 112, 17, 20, 48, 88),
  "c": T(("v", 160), ("v", 128), 224, 18, 21, 32, 80),
}
def R(cb, off, n): return (a if cb[0] == "a" else v)(cb[1] + off, n)
V_SUM, V_SUM2, V_TM, V_NINF, V_LANEC = 22, 23, 24, 25, 26
V_L16, V_RK, V_RV, V_ST = 1, 2, 3, 4
V_T = 240
S_WS = 8
S_W, S_P, S_HEAD = 12, 13, 14
S_SRC, S_DST, S_RSLOT, S_CNT = 16, 18, 19, 20
S_DA, S_DB = 21, 22
S_REG = 23
S_T = 24
S_KVB = 32
S_LIM = 34
S_XSRC, S_XDST = 35, 36
S_WLT2 = 37
S_STEP = 38
S_KSLOT = 39
S_MK = 40
S_RET = 48
S_STA, S_STB = 50, 51
S_SRC2, S_DST2, S_DA2, S_DB2, S_REG2 = 52, 53, 54, 55, 56
S_TW = 64
S_TROW, S_TCOL = 68, 69
V_TOUCH = 27
OOB = 0x7ff00000
THRV = "0x43800000"
NINF = "0xff800000"

def qk(x):
    t = TL[x]
    return [f"v_mfma_f32_32x32x16_bf16 {v(t.S,16)}, {a(A_K+4*s_,4)}, {R(t.Q,4*s_,4)}, {v(t.NM,16) if s_ == 0 else v(t.S,16)}" for s_ in range(8)]
def pv(x):
    t = TL[x]
    return [f"v_mfma_f32_32x32x16_bf16 {R(t.O,16*dt,16)}, {a(A_V+4*(2*dt+e),4)}, {v(t.P+4*e,4)}, {R(t.O,16*dt,16)}" for dt in range(4) for e in range(2)]
def cst(r):
    g, rr = r // 4, r % 4
    return 16*(g & 1) + 8*(g >> 1) + rr
def sm_core(x, sdelta=None):
    t = TL[x]; S_, P, E = t.S, t.P, V_E
    ex = [f"v_exp_f32 v{E+i}, v{S_+i}" for i in range(16)]
    def post(j):
        if j == 0: ad = [f"v_add_f32 v{V_SUM}, v{E}, v{E+1}"]
        elif j == 1: ad = [f"v_add_f32 v{V_SUM2}, v{E+2}, v{E+3}"]
        else: ad = [f"v_add_f32 v{V_SUM}, v{V_SUM}, v{E+2*j}", f"v_add_f32 v{V_SUM2}, v{V_SUM2}, v{E+2*j+1}"]
        return ad, [f"v_cvt_pk_bf16_f32 v{P+j}, v{E+2*j}, v{E+2*j+1}"]
    L = []
    if sdelta is None:
        L += ex[:2]
        for j in range(8):
            ad, cv = post(j)
            if j < 7: L += [ex[2*j+2]] + ad + [ex[2*j+3]] + cv
            else: L += ["s_nop 0"] + ad + cv
    else:
        cm = [f"v_cmp_le_i32_e64 {s(S_MK+2*(r%4),2)}, {cst(r)}, v{V_TM}" for r in range(16)]
        cn = [f"v_cndmask_b32_e64 v{S_+r}, v{V_NINF}, v{S_+r}, {s(S_MK+2*(r%4),2)}" for r in range(16)]
        L += [f"v_add_u32 v{V_TM}, s{sdelta}, v{V_LANEC}"] + cm[:3]
        def mk(r):
            return ([cm[r+3]] if r + 3 < 16 else []) + [cn[r]]
        L += mk(0) + mk(1) + [ex[0]] + mk(2) + [ex[1]] + mk(3)
        for j in range(8):
            ad, cv = post(j)
            if j < 7:
                L += [ex[2*j+2]] + (mk(2*j+4) if 2*j+4 < 16 else []) + ad + [ex[2*j+3]] + (mk(2*j+5) if 2*j+5 < 16 else []) + cv
            else: L += ["s_nop 0"] + ad + cv
    L += [f"v_add_f32 v{V_SUM}, v{V_SUM}, v{V_SUM2}"]
    return L

class Gen:
    def __init__(self, name):
        self.k = K(name + "_kernel"); self.name = name; self.sites = []; self.n = 0
    def check(self, x):
        self.n += 1
        lab = f"L_{self.name}_s{self.n}"
        t = TL[x]
        self.sites.append((lab, x))
        return [f"v_cmp_gt_f32 vcc, v{V_SUM}, v{t.THR}", f"s_cbranch_vccnz {lab}", lab + "r:", f"v_add_f32 v{t.L}, v{t.L}, v{V_SUM}"]
    def emit(self, lines):
        for l in lines:
            if l.endswith(":"): self.k.label(l[:-1])
            else: self.k(l)
    def slow(self, x):
        k = self.k
        tl = TL[x]
        S_, NM = tl.S, tl.NM
        t = V_T
        k.label(f"L_{self.name}_slow_{x}")
        k(f"v_max3_f32 v{t}, v{S_}, v{S_+1}, v{S_+2}")
        for i in range(3, 15, 2):
            k(f"v_max3_f32 v{t}, v{t}, v{S_+i}, v{S_+i+1}")
        k(f"v_max_f32 v{t}, v{t}, v{S_+15}")
        k(f"v_mov_b32 v{t+1}, v{t}")
        k(f"v_cmp_gt_f32_e64 {s(S_MK,2)}, 0, v{tl.THR}")
        k("s_nop 0")
        k(f"v_permlane32_swap_b32 v{t}, v{t+1}")
        k(f"v_mov_b32 v{t+3}, 0")
        k(f"v_mov_b32 v{t+2}, {THRV}")
        k(f"v_max_f32 v{t}, v{t}, v{t+1}")
        k(f"v_cndmask_b32_e64 v{t+1}, v{t+3}, v{V_NINF}, {s(S_MK,2)}")
        k(f"v_max_f32 v{t}, v{t}, v{t+1}")
        k(f"v_cmp_eq_f32 vcc, v{t}, v{V_NINF}")
        k("s_nop 1")
        k(f"v_cndmask_b32 v{t}, v{t}, v{t+3}, vcc")
        k(f"v_cndmask_b32 v{tl.THR}, v{t+2}, v{tl.THR}, vcc")
        k(f"v_sub_f32 v{t+2}, v{NM}, v{t}")
        for i in range(16):
            k(f"v_mov_b32 v{NM+i}, v{t+2}")
            k(f"v_sub_f32 v{S_+i}, v{S_+i}, v{t}")
        k(f"s_cmp_eq_u64 {s(S_MK,2)}, exec")
        k(f"s_cbranch_scc1 L_{self.name}_slow_{x}_n")
        k(f"v_max_f32 v{t+1}, 0, v{t}")
        k(f"v_exp_f32 v{t+1}, -v{t+1}")
        k("s_nop 7")
        k(f"v_mul_f32 v{tl.L}, v{tl.L}, v{t+1}")
        if tl.O[0] == "a":
            for i in range(0, 64, 4):
                for r in range(4): k(f"v_accvgpr_read_b32 v{t+4+r}, a{tl.O[1]+i+r}")
                for r in range(4): k(f"v_mul_f32 v{t+4+r}, v{t+4+r}, v{t+1}")
                for r in range(4): k(f"v_accvgpr_write_b32 a{tl.O[1]+i+r}, v{t+4+r}")
        else:
            for i in range(64): k(f"v_mul_f32 v{tl.O[1]+i}, v{tl.O[1]+i}, v{t+1}")
        k.label(f"L_{self.name}_slow_{x}_n")
        for l in sm_core(x): k(l)
        k("s_nop 1")
        k(f"s_setpc_b64 {s(S_RET,2)}")
    def tramps(self):
        k = self.k
        for lab, x in self.sites:
            k.label(lab)
            k(f"s_call_b64 {s(S_RET,2)}, L_{self.name}_slow_{x}")
            k(f"s_branch {lab}r")

    def body(self, kind, loop=None):
        phase = int(kind[1]); masked = kind[0] == "M"; last = kind.endswith("L")
        xa = "a" if phase == 1 else "c"
        xn = "c" if (phase == 2 or kind == "M1L") else "a"
        nv = 8 if phase == 1 else 16
        if kind == "M2L": nv = 3 if TOUCH else 0
        DM = lambda so, i: f"buffer_load_dwordx4 v{V_L16}, {s(S_WS,4)}, s{so} offen offset:{1024*i} lds"
        kr = [f"ds_read_b128 {a(A_K+4*i,4)}, v{V_RK} offset:{i*1024}" for i in range(8)]
        vr = [f"ds_read_b128 {a(A_V+4*i,4)}, v{V_RV} offset:{8192+i*1024}" for i in range(8)]
        if kind == "M2L": kr = []
        sm = sm_core(xa, S_DA if masked else None)
        fixed = {0: [f"s_waitcnt vmcnt({nv})", "s_barrier"], 14: []}
        out = merge2(qk("b") + pv("b"), [(sm, 0, 14), (kr, 1, 9), (vr[:7], 9, 16), ([self.check(xa)], 14, 15)], fixed)
        self.emit(out)
        sm = sm_core("b", S_DB if (masked and phase == 2) else None)
        d = []
        if phase == 1:
            d.append([f"s_mov_b32 m0, s{S_DST}", f"s_add_u32 s{S_DST}, s{S_DST}, 16384", DM(S_SRC, 0)])
            d += [DM(S_SRC, 1), DM(S_SRC, 2)]
            if not masked:
                d.append([DM(S_SRC, 3), f"s_and_b32 s{S_DST}, s{S_DST}, 0xffff", f"s_add_u32 s{S_SRC}, s{S_SRC}, 16384"])
            else:
                d.append([DM(S_SRC, 3), f"s_and_b32 s{S_DST}, s{S_DST}, 0xffff", f"s_add_u32 s{S_SRC}, s{S_SRC}, s{S_STEP}"])
                d.append([f"s_mov_b32 m0, s{S_XDST}", f"s_add_u32 s{S_XDST}, s{S_XDST}, 16384", DM(S_XSRC, 0)])
                d += [[DM(S_XSRC, 1), f"s_mov_b32 s{S_STEP}, 0x8000"], [DM(S_XSRC, 2), f"s_and_b32 s{S_XDST}, s{S_XDST}, 0xffff"]]
                d.append([DM(S_XSRC, 3), f"s_or_b32 s{S_XDST}, s{S_XDST}, 0x10000", f"s_add_u32 s{S_XSRC}, s{S_XSRC}, 0x8000"])
        elif not masked:
            d.append([f"s_cmp_lt_u32 s{S_SRC}, s{S_LIM}", f"s_mov_b32 m0, s{S_DST}", f"s_cselect_b32 s{S_T}, s{S_SRC}, {OOB:#x}", DM(S_T, 0)])
            d += [[DM(S_T, 1), f"s_add_u32 s{S_T+1}, s{S_T}, 4096"], [DM(S_T, 2), f"s_add_u32 s{S_SRC}, s{S_SRC}, 0x8000"]]
            d.append([DM(S_T, 3), f"s_add_u32 m0, s{S_DST}, 4096", f"s_add_u32 s{S_DST}, s{S_DST}, 16384"])
            d += [[DM(S_T+1, 0), f"s_and_b32 s{S_DST}, s{S_DST}, 0xffff"], [DM(S_T+1, 1), f"s_or_b32 s{S_DST}, s{S_DST}, s{S_REG}"], DM(S_T+1, 2), DM(S_T+1, 3)]
        if kind == "M2" and TOUCH:
            for i in range(3):
                d.append([f"s_cmp_lt_u32 s{S_TROW}, 4096",
                          f"s_cselect_b32 s{S_TW}, s60, s62",
                          f"s_cselect_b32 s{S_TW+1}, s61, s63",
                          f"s_cselect_b32 s{S_TW+2}, {H*D*M*2:#x}, s{S_TW+6}",
                          f"s_and_b32 s{S_T}, s{S_TROW}, 4095",
                          f"s_lshl_b32 s{S_T}, s{S_T}, 10",
                          f"s_add_u32 s{S_T}, s{S_T}, s{S_TCOL}",
                          f"buffer_load_dword v{V_TOUCH+1+i}, v{V_TOUCH}, {s(S_TW,4)}, s{S_T} offen",
                          f"s_add_u32 s{S_TROW}, s{S_TROW}, 16"])
        if kind == "M1L":
            misc = [[f"s_mov_b32 s{S_REG}, s{S_REG2}", f"s_mov_b32 s{S_RSLOT}, s{S_REG2}"]]
        else:
            misc = [[f"s_add_u32 s{S_RSLOT}, s{S_RSLOT}, 16384", f"s_and_b32 s{S_RSLOT}, s{S_RSLOT}, 0xffff"]]
            if phase == 2: misc.append(f"s_or_b32 s{S_RSLOT}, s{S_RSLOT}, s{S_REG}")
        misc.append(f"v_add_u32 v{V_RV}, s{S_RSLOT}, v{V_L16}")
        if kind == "M1":
            misc.append([f"s_cmp_eq_u32 s{S_CNT}, 1", f"s_cselect_b32 s{S_T+2}, s{S_KSLOT}, s{S_RSLOT}"])
            misc.append(f"v_add_u32 v{V_RK}, s{S_T+2}, v{V_L16}")
        else:
            misc.append(f"v_mov_b32 v{V_RK}, v{V_RV}")
        if masked:
            st = 32 if phase == 1 else 64
            misc.append(f"s_sub_u32 s{S_DA}, s{S_DA}, {st}")
        if kind == "M1L":
            misc.append([f"s_mov_b32 s{S_DA}, s{S_DA2}"])
        tail = []
        if kind == "M2": tail.append(f"s_sub_u32 s{S_DB}, s{S_DB}, 64")
        if kind == "M1L": tail += [f"s_mov_b32 s{S_SRC}, s{S_SRC2}", f"s_mov_b32 s{S_DST}, s{S_DST2}"]
        if loop: tail += [f"s_sub_u32 s{S_CNT}, s{S_CNT}, 1", f"s_cmp_lg_u32 s{S_CNT}, 0"]
        if kind != "M2L":
            mf = qk(xn) + pv(xa)
            mf[0] = ["s_waitcnt lgkmcnt(7)", mf[0]]
            mf[8] = ["s_waitcnt lgkmcnt(0)", mf[8]]
            out = merge2(mf, [(sm, 0, 14), (vr[7:], 0, 1), (d, 1, 13), (misc, 2, 10), ([self.check("b")], 14, 15), ([tail] if tail else [], 14, 15)])
            self.emit(out)
            if loop: self.k(f"s_cbranch_scc1 {loop}")
        else:
            mf = pv(xa)
            mf[0] = [vr[7], "s_waitcnt lgkmcnt(7)", mf[0]]
            for i in range(1, 8): mf[i] = [f"s_waitcnt lgkmcnt({7-i})", mf[i]]
            out = merge2(mf, [(sm, 0, 8)])
            self.emit(out + self.check("b"))
        self.k.stamp()
    def halfsum(self, r, t):
        return [f"v_mov_b32 v{t}, v{r}", "s_nop 1", f"v_permlane32_swap_b32 v{r}, v{t}", "s_nop 1", f"v_add_f32 v{r}, v{r}, v{t}"]

def gen_k2(name="attn"):
    G = Gen(name); k = G.k
    E = f"L_{name}_end"
    k("s_cmp_ge_u32 s2, 256")
    k(f"s_cbranch_scc1 {E}")
    k("s_load_dwordx2 s[4:5], s[0:1], 96")
    k("s_load_dwordx2 s[60:61], s[0:1], 40")
    k("s_load_dwordx2 s[62:63], s[0:1], 72")
    k.prof_init(8, 90)
    k.stamp()
    k("v_lshrrev_b32 v5, 6, v0")
    k("v_and_b32 v0, 63, v0")
    k(f"v_readfirstlane_b32 s{S_W}, v5")
    k(f"v_lshlrev_b32 v{V_L16}, 4, v0")
    k("s_and_b32 s3, s2, 7")
    k("s_lshr_b32 s6, s2, 3")
    k("s_and_b32 s7, s6, 3")
    k("s_lshl_b32 s3, s3, 2")
    k(f"s_add_u32 s{S_HEAD}, s3, s7")
    k(f"s_lshr_b32 s{S_P}, s6, 2")
    k(f"s_lshl_b32 s{S_KVB}, s{S_HEAD}, 20")
    k(f"s_add_u32 s{S_KVB}, s{S_KVB}, {KV_OFF}")
    k(f"s_lshl_b32 s{S_T}, s{S_W}, 12")
    k(f"s_add_u32 s{S_T+1}, s{S_T}, s{S_KVB}")
    k(f"s_cmp_lt_u32 s{S_W}, 2")
    k(f"s_cselect_b32 s{S_WLT2}, 16384, 0")
    k(f"s_cselect_b32 s{S_T+2}, s{S_T+1}, {OOB:#x}")
    k(f"s_add_u32 m0, s{S_T}, {3*16384}")
    k(f"s_lshl_b32 s{S_T+3}, s{S_P}, 2")
    k(f"s_sub_u32 s{S_T+4}, 60, s{S_T+3}")
    k(f"s_add_u32 s{S_T+3}, s{S_T+3}, s{S_W}")
    k(f"s_xor_b32 s{S_T+5}, s{S_W}, 1")
    k(f"s_add_u32 s{S_T+5}, s{S_T+5}, s{S_T+4}")
    k(f"s_add_u32 s{S_T+4}, s{S_T+4}, s{S_W}")
    k(f"s_lshl_b32 s{S_T+6}, s{S_HEAD}, 19")
    k(f"s_add_u32 s{S_T+6}, s{S_T+6}, {QF_OFF}")
    k("s_waitcnt lgkmcnt(0)")
    k.srd(S_WS, 4, WS_USED)
    for i in range(4):
        k(f"buffer_load_dwordx4 v{V_L16}, {s(S_WS,4)}, s{S_T+2} offen offset:{1024*i} lds")
    def loadq(stile, x):
        k(f"s_lshl_b32 s{S_T+7}, s{stile}, 13")
        k(f"s_add_u32 s{S_T+7}, s{S_T+7}, s{S_T+6}")
        k(f"s_add_u32 s3, s{S_T+7}, 4096")
        for i in range(8): k(f"buffer_load_dwordx4 {R(TL[x].Q,4*i,4)}, v{V_L16}, {s(S_WS,4)}, s{S_T+7 if i < 4 else 3} offen offset:{1024*(i%4)}")
    loadq(S_T+3, "a")
    k(f"s_add_u32 s{S_SRC}, s{S_T+1}, s{S_WLT2}")
    k(f"s_mov_b32 s{S_DST}, s{S_T}")
    for u in range(3):
        k(f"s_mov_b32 m0, s{S_DST}")
        k(f"s_add_u32 s{S_DST}, s{S_DST}, 16384")
        for i in range(4):
            k(f"buffer_load_dwordx4 v{V_L16}, {s(S_WS,4)}, s{S_SRC} offen offset:{1024*i} lds")
        k(f"s_add_u32 s{S_SRC}, s{S_SRC}, 16384")
        if u == 0: loadq(S_T+4, "b")
    loadq(S_T+5, "c")
    for i in range(4): k(f"v_mov_b32 v{V_T+i}, 0")
    k("v_and_b32 v5, 31, v0")
    k("v_lshrrev_b32 v6, 5, v0")
    z = v(V_T, 4)
    for b in range(0, 128, 16): k(f"v_mfma_f32_32x32x16_bf16 {a(b,16)}, {z}, {z}, 0")
    for b in (A_V, A_V+16): k(f"v_mfma_f32_32x32x16_bf16 {a(b,16)}, {z}, {z}, 0")
    for b in (80, 96, 112, 160, 176, 192, 208, 224): k(f"v_mfma_f32_32x32x16_bf16 {v(b,16)}, {z}, {z}, 0")
    k("v_lshlrev_b32 v7, 2, v6")
    k(f"v_sub_u32 v{V_LANEC}, v5, v7")
    k("v_lshrrev_b32 v7, 4, v5")
    k(f"v_mul_u32_u24 v{V_ST}, {KS3*1024}, v7")
    k(f"v_lshl_add_u32 v{V_ST}, v6, 8, v{V_ST}")
    k("v_and_b32 v7, 15, v5")
    k(f"v_lshl_add_u32 v{V_ST}, v7, 4, v{V_ST}")
    k(f"v_mov_b32 v{V_NINF}, {NINF}")
    for x in "abc":
        k(f"v_mov_b32 v{TL[x].L}, 0")
        k(f"v_mov_b32 v{TL[x].THR}, -1.0")
    k(f"s_lshl_b32 s{S_T+7}, s{S_HEAD}, 12")
    k(f"s_add_u32 s{S_T+7}, s{S_T+7}, {AF_OFF}")
    k(f"s_mul_i32 s{S_STA}, s{S_T+3}, {2*KS3*1024}")
    k(f"s_add_u32 s{S_STA}, s{S_STA}, s{S_T+7}")
    k(f"s_mul_i32 s{S_STB}, s{S_T+4}, {2*KS3*1024}")
    k(f"s_add_u32 s{S_STB}, s{S_STB}, s{S_T+7}")
    k(f"s_lshl_b32 s{S_T+7}, s{S_P}, 16")
    k(f"s_add_u32 s{S_T+7}, s{S_T+7}, {3*16384}")
    k(f"s_add_u32 s{S_T+7}, s{S_T+7}, s{S_T+1}")
    k(f"s_lshl_b32 s{S_XSRC}, s{S_WLT2}, 1")
    k(f"s_add_u32 s{S_XSRC}, s{S_XSRC}, s{S_T+7}")
    k(f"s_add_u32 s{S_XDST}, s{S_T}, {0x10000 + 3*16384}")
    k(f"s_add_u32 s{S_STEP}, s{S_WLT2}, 16384")
    k(f"s_mov_b32 s{S_REG}, 0")
    k(f"s_mov_b32 s{S_RSLOT}, 0")
    k(f"s_lshl_b32 s{S_DA}, s{S_W}, 5")
    k(f"s_and_b32 s{S_T}, s{S_W}, 1")
    k(f"s_lshl_b32 s{S_REG2}, s{S_T}, 16")
    k(f"s_add_u32 s{S_KSLOT}, s{S_REG2}, {3*16384}")
    k(f"s_lshr_b32 s{S_T+1}, s{S_W}, 1")
    k(f"s_lshl_b32 s{S_T+2}, s{S_P}, 2")
    k(f"s_sub_u32 s{S_T+3}, 64, s{S_T+2}")
    k(f"s_lshl_b32 s{S_T+3}, s{S_T+3}, 14")
    k(f"s_add_u32 s{S_LIM}, s{S_T+3}, s{S_KVB}")
    k(f"s_add_u32 s{S_T+2}, s{S_T+2}, s{S_T}")
    k(f"s_add_u32 s{S_T+2}, s{S_T+2}, 10")
    k(f"s_lshl_b32 s{S_T+2}, s{S_T+2}, 14")
    k(f"s_add_u32 s{S_T+2}, s{S_T+2}, s{S_KVB}")
    k(f"s_cmp_eq_u32 s{S_T+1}, 0")
    k(f"s_movk_i32 s{S_T+3}, 0x2000")
    k(f"s_cselect_b32 s{S_T+3}, 0x8000, s{S_T+3}")
    k(f"s_add_u32 s{S_SRC2}, s{S_T+2}, s{S_T+3}")
    k(f"s_lshl_b32 s{S_T+3}, s{S_T+1}, 13")
    k(f"s_add_u32 s{S_DST2}, s{S_T+3}, s{S_KSLOT}")
    k(f"s_xor_b32 s{S_T+3}, s{S_W}, 1")
    k(f"s_sub_u32 s{S_T+3}, s{S_T+3}, s{S_T}")
    k(f"s_lshl_b32 s{S_DA2}, s{S_T+3}, 5")
    k(f"s_sub_u32 s{S_T+3}, s{S_W}, s{S_T}")
    k(f"s_lshl_b32 s{S_DB}, s{S_T+3}, 5")
    k(f"s_lshr_b32 s{S_TROW}, s2, 3")
    k(f"s_lshl_b32 s{S_TROW}, s{S_TROW}, 2")
    k(f"s_add_u32 s{S_TROW}, s{S_TROW}, s{S_W}")
    k(f"s_mul_i32 s{S_TROW}, s{S_TROW}, 48")
    k(f"s_and_b32 s{S_TCOL}, s2, 1")
    k(f"s_lshl_b32 s{S_TCOL}, s{S_TCOL}, 9")
    k(f"v_lshrrev_b32 v5, 2, v0")
    k(f"v_and_b32 v6, 3, v0")
    k(f"v_lshlrev_b32 v{V_TOUCH}, 10, v5")
    k(f"v_lshl_add_u32 v{V_TOUCH}, v6, 7, v{V_TOUCH}")
    k(f"s_and_b32 s61, s61, 0xffff")
    k(f"s_and_b32 s63, s63, 0xffff")
    k(f"s_mov_b32 s{S_TW+3}, 0x00020000")
    k(f"s_mov_b32 s{S_TW+6}, {F*M*2:#x}")
    k(f"v_add_u32 v{V_RK}, {3*16384}, v{V_L16}")
    k(f"s_waitcnt vmcnt(28)")
    k("s_barrier")
    for i in range(8): k(f"ds_read_b128 {a(A_K+4*i,4)}, v{V_RK} offset:{i*1024}")
    k(f"v_mov_b32 v{V_RK}, v{V_L16}")
    k(f"v_mov_b32 v{V_RV}, v{V_L16}")
    k(f"s_lshl_b32 s{S_CNT}, s{S_P}, 2")
    for i, l in enumerate(qk("a")):
        k(f"s_waitcnt lgkmcnt({7-i})")
        k(l)
    k("s_waitcnt vmcnt(16)")
    k("s_nop 7")
    k.stamp()
    k(f"s_cmp_eq_u32 s{S_CNT}, 0")
    k(f"s_cbranch_scc1 L_{name}_m1pre")
    k.label(f"L_{name}_n1")
    G.body("N1", f"L_{name}_n1")
    k.label(f"L_{name}_m1pre")
    k(f"s_mov_b32 s{S_CNT}, 3")
    k.label(f"L_{name}_m1")
    G.body("M1", f"L_{name}_m1")
    G.body("M1L")
    k(f"s_lshl_b32 s{S_T}, s{S_P}, 2")
    k(f"s_sub_u32 s{S_CNT}, 28, s{S_T}")
    k(f"s_cmp_eq_u32 s{S_CNT}, 0")
    k(f"s_cbranch_scc1 L_{name}_m2")
    k.label(f"L_{name}_n2")
    G.body("N2", f"L_{name}_n2")
    k.label(f"L_{name}_m2")
    G.body("M2")
    G.body("M2L")
    C, B, A_ = TL["c"], TL["b"], TL["a"]
    t = V_T
    pre = [f"s_lshr_b32 s{S_T}, s{S_W}, 1",
           f"s_add_u32 s{S_T}, s{S_T}, 1",
           f"s_lshl_b32 s{S_T}, s{S_T}, 14",
           f"s_add_u32 s{S_T}, s{S_T}, s{S_RSLOT}",
           f"s_and_b32 s{S_T}, s{S_T}, 0xffff",
           f"s_or_b32 s{S_T+1}, s{S_T}, s{S_REG}",
           f"s_xor_b32 s{S_T+2}, s{S_T+1}, 0x10000",
           f"v_add_u32 v{V_RK}, s{S_T+1}, v{V_L16}",
           f"v_add_u32 v{V_RV}, s{S_T+2}, v{V_L16}",
           f"s_lshl_b32 s{S_T+3}, s{S_W}, 9",
           f"s_add_u32 s{S_T+3}, s{S_T+3}, 0x20000",
           f"s_xor_b32 s{S_T+4}, s{S_T+3}, 512",
           f"v_lshrrev_b32 v{t+3}, 1, v{V_L16}",
           f"v_add_u32 v{t+4}, s{S_T+4}, v{t+3}",
           f"v_add_u32 v{t+3}, s{S_T+3}, v{t+3}",
           f"v_cmp_gt_f32 vcc, 0, v{C.THR}",
           f"v_sub_f32 v{t}, 0, v{C.NM}",
           f"v_mov_b32 v{t+2}, 0xff7fffff",
           f"v_cndmask_b32 v{t}, v{t}, v{t+2}, vcc",
           f"v_mov_b32 v{t+1}, v{C.L}"]
    G.emit(pre)
    wr = [f"ds_write_b128 v{V_RK}, {v(C.O[1]+4*i,4)} offset:{i*1024}" for i in range(16)] + [f"ds_write_b64 v{t+3}, {v(t,2)}"]
    G.emit(merge2(pv("b"), [(wr, 0, 8)]))
    k("s_waitcnt lgkmcnt(0)")
    k("s_barrier")
    O2 = C.O[1]
    k(f"ds_read_b64 {v(t,2)}, v{t+4}")
    for i in range(16):
        k(f"ds_read_b128 {v(O2+4*i,4)}, v{V_RV} offset:{i*1024}")
    G.emit(G.halfsum(A_.L, t+5))
    k(f"v_rcp_f32 v{V_SUM}, v{A_.L}")
    k("s_nop 0")
    def fin(x, sbase, sc, o2=None, sc2=None):
        for dt in range(4):
            for e in range(2):
                tt = 32 + ((2*dt+e) % 4) * 12
                b = 16*dt + 8*e
                for r in range(8): k(f"v_accvgpr_read_b32 v{tt+r}, a{TL[x].O[1]+b+r}")
                for r in range(8): k(f"v_mul_f32 v{tt+r}, v{tt+r}, v{sc}")
                if o2 is not None:
                    for r in range(8): k(f"v_fmac_f32 v{tt+r}, v{o2+b+r}, v{sc2}")
                for r in range(4): k(f"v_cvt_pk_bf16_f32 v{tt+8+r}, v{tt+2*r}, v{tt+2*r+1}")
                k(f"buffer_store_dwordx4 {v(tt+8,4)}, v{V_ST}, {s(S_WS,4)}, s{sbase} offen offset:{dt*1024+e*512}")
    fin("a", S_STA, V_SUM)
    k("s_waitcnt lgkmcnt(0)")
    k(f"v_sub_f32 v{t+2}, 0, v{B.NM}")
    k(f"v_max_f32 v{t+3}, v{t+2}, v{t}")
    k(f"v_sub_f32 v{t+2}, v{t+2}, v{t+3}")
    k(f"v_sub_f32 v{t}, v{t}, v{t+3}")
    k(f"v_exp_f32 v{t+2}, v{t+2}")
    k(f"v_exp_f32 v{t}, v{t}")
    k("s_nop 0")
    k(f"v_mul_f32 v{t+4}, v{B.L}, v{t+2}")
    k(f"v_fmac_f32 v{t+4}, v{t+1}, v{t}")
    G.emit(G.halfsum(t+4, t+5))
    k(f"v_rcp_f32 v{t+4}, v{t+4}")
    k("s_nop 0")
    k(f"v_mul_f32 v{V_SUM}, v{t+2}, v{t+4}")
    k(f"v_mul_f32 v{V_SUM2}, v{t}, v{t+4}")
    fin("b", S_STB, V_SUM, O2, V_SUM2)
    k("s_waitcnt vmcnt(0)") if os.environ.get("PROF") else None
    k.stamp()
    k.prof_flush(S_WS, 2, S_W, 0)
    k.label(E)
    k("s_endpgm")
    G.tramps()
    for x in "abc": G.slow(x)
    return k, 512, 256, 96, f"; @launch kernel={name}_kernel grid=(256,1,1) block=(256,1,1) lds={131072+2048}"
if __name__ == "__main__":
    import hz
    k = gen_k2()[0]
    d = {"L_attn_n1": [True], "L_attn_m1": [True, True], "L_attn_n2": [True, True]}
    hz.check(hz.trace(k.L, dict(d)), "k2")
    for i in range(1, 13): d[f"L_attn_s{i}"] = [True, False, True]
    hz.check(hz.trace(k.L, dict(d)), "k2-slow")
    for x in "abc": d[f"L_attn_slow_{x}_n"] = [True]*20
    hz.check(hz.trace(k.L, dict(d)), "k2-slow-fresh")
    hz.check(hz.trace(k.L, {"L_attn_m1pre": [True], "L_attn_m1": [True, True], "L_attn_m2": [True]}), "k2-short")
```

```python
from ag import *
from layout import *
import os
NT = os.environ.get("K3_NT", "")
NTT = os.environ.get("K3_NTT", "")
R = 8
V_TR = 2
V_DMA = 6
V_TOK = 8
V_X = 12
V_W = 16
V_ACC = 48
V_T = 112
S_WS, S_WO, S_WD, S_PF, S_OUT, S_X = 8, 12, 16, 20, 24, 28
S_W, S_C, S_LB, S_TB, S_COL = 32, 33, 34, 35, 36
S_T = 40
S_K1, S_K2 = 48, 49
OOB = 0x7ff00000
def accr(mt, T): return V_ACC + (mt*4 + T)*4

def prefetch(slot):
    L = []
    L.append([f"s_cmp_lt_u32 s{S_C}, 128",
              f"s_cselect_b32 s{S_PF}, s{S_WO}, s{S_WD}",
              f"s_cselect_b32 s{S_PF+1}, s{S_WO+1}, s{S_WD+1}",
              f"s_cselect_b32 s{S_PF+2}, s{S_WO+2}, s{S_WD+2}",
              f"s_cselect_b32 s{S_K1}, {15*1024}, s{S_T+4}",
              f"s_cselect_b32 s{S_K2}, {6*1024}, s{S_T+5}",
              f"s_and_b32 s{S_T}, s{S_C}, 127",
              f"s_lshl_b32 s{S_T}, s{S_T}, 15",
              f"s_add_u32 s{S_T}, s{S_T}, s{S_COL}",
              f"s_lshl_b32 s{S_T+1}, s{S_C}, 10",
              f"s_add_u32 s{S_T+1}, s{S_T+1}, s{S_TB}",
              f"s_cmp_lt_u32 s{S_C}, {KS3}",
              f"s_cselect_b32 s{S_T}, s{S_T}, {OOB:#x}",
              f"s_cselect_b32 s{S_T+1}, s{S_T+1}, {OOB:#x}",
              f"s_add_u32 m0, s{S_LB}, {slot*4096}",] + ([f"s_mov_b32 s{S_T}, {OOB:#x}"] if os.environ.get("K3_NOW") else []) + ([f"s_mov_b32 s{S_T+1}, {OOB:#x}"] if os.environ.get("K3_NOTOK") else []) + [
              f"s_add_u32 s{S_C}, s{S_C}, 4"])
    for i in range(4):
        pre = []
        if i == 0: so = f"s{S_T}"
        else:
            src = {1: f"s{S_K1}", 2: f"s{S_K2}", 3: f"{21*1024}"}[i]
            pre = [f"s_add_u32 s{S_T+2}, s{S_T}, {src}"]; so = f"s{S_T+2}"
        L.append(pre + [f"buffer_load_dwordx4 v{V_DMA}, {s(S_PF,4)}, {so} offen offset:{1024*i}{NT} lds"])
    for T in range(4):
        L.append(f"buffer_load_dwordx4 {v(V_T + slot*16 + T*4, 4)}, v{V_TOK+T}, {s(S_WS,4)}, s{S_T+1} offen{NTT}")
    return L
def tr_reads(slot, buf):
    return [f"ds_read_b64_tr_b16 {v(V_W + buf*16 + mt*4 + j*2, 2)}, v{V_TR+mt} offset:{slot*4096 + j*2048}" for mt in range(4) for j in range(2)]

def gen_k3(name="outp"):
    k = K(name + "_kernel")
    E = f"L_{name}_end"
    k("s_cmp_ge_u32 s2, 256")
    k(f"s_cbranch_scc1 {E}")
    k("s_load_dwordx2 s[64:65], s[0:1], 0")
    k("s_load_dwordx2 s[66:67], s[0:1], 40")
    k("s_load_dwordx4 s[68:71], s[0:1], 72")
    k("s_load_dwordx2 s[72:73], s[0:1], 96")
    k.prof_init(240, 90)
    k.stamp()
    k("v_lshrrev_b32 v1, 6, v0")
    k("v_and_b32 v0, 63, v0")
    k(f"v_readfirstlane_b32 s{S_W}, v1")
    k("v_lshrrev_b32 v15, 5, v0")
    k("v_bfe_u32 v16, v0, 2, 3")
    k("v_and_b32 v17, 3, v0")
    k("v_lshlrev_b32 v18, 10, v15")
    k("v_lshl_add_u32 v18, v16, 7, v18")
    k("v_lshl_add_u32 v18, v17, 3, v18")
    k("v_lshrrev_b32 v19, 1, v16")
    k("v_lshl_add_u32 v18, v19, 5, v18")
    k("v_lshl_add_u32 v18, v1, 15, v18")
    for mt in range(4):
        k(f"v_xor_b32 v{V_TR+mt}, {mt*32}, v18")
    k("v_lshrrev_b32 v15, 3, v0")
    k("v_and_b32 v16, 7, v0")
    k("v_and_b32 v17, 6, v15")
    k("v_xor_b32 v16, v16, v17")
    k(f"v_lshlrev_b32 v{V_DMA}, 10, v15")
    k(f"v_lshl_add_u32 v{V_DMA}, v16, 4, v{V_DMA}")
    k(f"v_lshlrev_b32 v{V_TOK}, 4, v0")
    for T in range(1, 4):
        k(f"v_add_u32 v{V_TOK+T}, {T*KS3*1024}, v{V_TOK}")
    k("s_bfe_u32 s3, s2, 0x20001")
    k("s_lshl_b32 s3, s3, 3")
    k("s_bfe_u32 s5, s2, 0x30003")
    k("s_add_u32 s3, s3, s5")
    k("s_and_b32 s4, s2, 1")
    k("s_lshl_b32 s4, s4, 2")
    k("s_lshr_b32 s5, s2, 6")
    k("s_add_u32 s4, s4, s5")
    k(f"s_lshl_b32 s{S_COL}, s4, 7")
    k(f"s_mul_i32 s{S_TB}, s3, {4*KS3*1024}")
    k(f"s_add_u32 s{S_TB}, s{S_TB}, {AF_OFF}")
    k(f"s_lshl_b32 s{S_LB}, s{S_W}, 15")
    k(f"s_mov_b32 s{S_C}, s{S_W}")
    k(f"s_mov_b32 s{S_T+4}, {7*1024}")
    k(f"s_mov_b32 s{S_T+5}, {14*1024}")
    k("s_waitcnt lgkmcnt(0)")
    k.srd(S_WS, 72, WS_USED)
    k.srd(S_WO, 66, H*D*M*2)
    k.srd(S_WD, 68, F*M*2)
    k.srd(S_PF, 66, H*D*M*2)
    k.srd(S_OUT, 70, S*M*2)
    k.srd(S_X, 64, S*M*2)
    def emit(items):
        for it in items:
            if isinstance(it, list):
                for l in it: k(l)
            else: k(it)
    for st in range(R-1):
        emit(prefetch(st))
    k("v_and_b32 v15, 15, v0")
    k("v_lshrrev_b32 v16, 4, v0")
    k(f"v_lshlrev_b32 v{V_X}, 10, v15")
    k(f"v_lshl_add_u32 v{V_X}, v16, 5, v{V_X}")
    k("s_lshl_b32 s5, s3, 16")
    k(f"s_lshl_b32 s6, s{S_W}, 14")
    k("s_add_u32 s5, s5, s6")
    k(f"s_add_u32 s5, s5, s{S_COL}")
    k(f"buffer_load_dwordx4 v[244:247], v{V_X}, {s(S_X,4)}, s5 offen nt")
    k(f"buffer_load_dwordx4 v[248:251], v{V_X}, {s(S_X,4)}, s5 offen offset:16 nt")
    for i in range(64):
        k(f"v_mov_b32 v{V_ACC+i}, 0")
    k(f"s_waitcnt vmcnt({8*(R-2)+2})")
    emit(tr_reads(0, 0))
    k(f"s_mov_b32 s6, 43")
    k.label(f"L_{name}_loop")
    for st in range(R):
        buf = st % 2
        k(f"s_waitcnt vmcnt({8*(R-3)}) lgkmcnt(0)")
        mf = [f"v_mfma_f32_16x16x32_bf16 {v(accr(mt,T),4)}, {v(V_W+buf*16+mt*4,4)}, {v(V_T+st*16+T*4,4)}, {v(accr(mt,T),4)}" for mt in range(4) for T in range(4)]
        streams = [(tr_reads((st+1) % R, 1-buf), 0, 8), (prefetch((st+R-1) % R), 0, 16)]
        for l in merge(mf, streams): k(l)
        if st == R-1: k.stamp()
        k("s_sub_u32 s6, s6, 1")
        k("s_cmp_eq_u32 s6, 0")
        if st < R-1: k(f"s_cbranch_scc1 L_{name}_fin")
        else: k(f"s_cbranch_scc0 L_{name}_loop")
    k.label(f"L_{name}_fin")
    k("s_waitcnt vmcnt(0) lgkmcnt(0)")
    k(f"v_lshlrev_b32 v14, 4, v0")
    k(f"v_add_u32 v14, s{S_LB}, v14")
    k("s_nop 4")
    for t in range(16):
        k(f"ds_write_b128 v14, {v(V_ACC+t*4,4)} offset:{t*1024}")
    k("s_waitcnt lgkmcnt(0)")
    k("s_barrier")
    k("v_and_b32 v15, 15, v0")
    k("v_lshrrev_b32 v13, 4, v0")
    k("v_lshlrev_b32 v14, 12, v13")
    k("v_lshl_add_u32 v14, v15, 4, v14")
    k(f"s_lshl_b32 s7, s{S_W}, 10")
    k("v_add_u32 v14, s7, v14")
    k("v_add_u32 v13, 0x10000, v14")
    for ws_ in range(4):
        for g in range(4):
            ad = "v14" if ws_ < 2 else "v13"
            k(f"ds_read_b128 {v(V_T + ws_*16 + g*4, 4)}, {ad} offset:{(ws_%2)*32768 + g*256}")
        if ws_ == 1: k("s_waitcnt lgkmcnt(4)")
    k("s_waitcnt vmcnt(0) lgkmcnt(0)")
    for i in range(16):
        k(f"v_add_f32 v{V_T+i}, v{V_T+i}, v{V_T+16+i}")
        k(f"v_add_f32 v{V_T+32+i}, v{V_T+32+i}, v{V_T+48+i}")
    for i in range(8):
        k(f"v_lshlrev_b32 v{V_T+16+2*i}, 16, v{244+i}")
        k(f"v_and_b32 v{V_T+16+2*i+1}, 0xffff0000, v{244+i}")
    for i in range(16):
        k(f"v_add_f32 v{V_T+i}, v{V_T+i}, v{V_T+32+i}")
        k(f"v_add_f32 v{V_T+i}, v{V_T+i}, v{V_T+16+i}")
    for i in range(8):
        k(f"v_cvt_pk_bf16_f32 v{24+i}, v{V_T+2*i}, v{V_T+2*i+1}")
    k(f"buffer_store_dwordx4 v[24:27], v{V_X}, {s(S_OUT,4)}, s5 offen")
    k(f"buffer_store_dwordx4 v[28:31], v{V_X}, {s(S_OUT,4)}, s5 offen offset:16")
    if os.environ.get("PROF"): k("s_waitcnt vmcnt(0)")
    k.stamp()
    k.prof_flush(S_WS, 3, S_W, 0)
    k.label(E)
    k("s_endpgm")
    return k, 252, 252, 96, f"; @launch kernel={name}_kernel grid=(256,1,1) block=(256,1,1) lds=131072"
if __name__ == "__main__":
    import hz
    k = gen_k3()[0]
    hz.check(hz.trace(k.L, {"L_outp_loop": [True], "L_outp_fin": [False]*7 + [False]*2 + [True]}), "k3")
```

```python
import numpy as np
S, M, H, D, F = 2048, 512, 32, 128, 1376
KS3 = 128 + 43
XF_OFF = 0
CF_OFF = 2 << 20
QF_OFF = 4 << 20
KV_OFF = 20 << 20
AF_OFF = 52 << 20
WS_DATA = AF_OFF + 128 * KS3 * 1024
import os
WS_USED = (84 << 20) if os.environ.get('PROF') else WS_DATA
QSCALE = (D ** -0.5) * 1.4426950408889634

def pi(i):
    return (i & ~24) | ((i & 8) << 1) | ((i & 16) >> 1)

def xf_index():
    t16, ks, lane, j = np.meshgrid(np.arange(128), np.arange(16), np.arange(64), np.arange(8), indexing="ij")
    g, tt = lane // 16, lane % 16
    return 16 * t16 + tt, 32 * ks + 8 * g + j
def qk_index(perm):
    t32, s, lane, j = np.meshgrid(np.arange(64), np.arange(8), np.arange(64), np.arange(8), indexing="ij")
    h, idx = lane // 32, lane % 32
    c, e = s // 2, s % 2
    g = 2 * e + h
    d = 32 * c + np.where(j < 4, 4 * g + j, 16 + 4 * g + j - 4)
    tok = 32 * t32 + (pi(idx) if perm else idx)
    return tok, d
def v_index():
    t32, dt, e, lane, j = np.meshgrid(np.arange(64), np.arange(4), np.arange(2), np.arange(64), np.arange(8), indexing="ij")
    h, dd = lane // 32, lane % 32
    g = 2 * e + h
    key = 32 * t32 + np.where(j < 4, 4 * g + j, 16 + 4 * g + j - 4)
    return key, 32 * dt + dd
def af_index():
    t16, c, lane, j = np.meshgrid(np.arange(128), np.arange(KS3), np.arange(64), np.arange(8), indexing="ij")
    g, tt = lane // 16, lane % 16
    e, h = g >> 1, g & 1
    kc = 32 * c + 16 * e + 4 * h + np.where(j < 4, j, 8 + j - 4)
    kh = 32 * c + np.where(j < 4, 4 * g + j, 16 + 4 * g + j - 4)
    return 16 * t16 + tt, np.where(c < 128, kc, kh)
```

```python
from ag import *
from layout import *
import struct, os
def f32hex(x): return "0x%08x" % struct.unpack("<I", struct.pack("<f", x))[0]
NT = os.environ.get("K1_NT", "")
NTT = os.environ.get("K1_NTT", "")
NTA = os.environ.get("K1_NTA", "")
STM = os.environ.get("K1_STMOD", "")
TD = int(os.environ.get("K1_TD", "2"))
V_TR = 2
V_DMA = 6
V_ROWL, V_COLP = 10, 11
V_ST = 12
V_STH = 13
V_TROW = 14
V_TCOL = 15
V_TV = 21
V_RQ = 22
V_R2 = 26
V_B = 32
V_ACC = 96
V_ACCG = 160
V_PK = 224
S_WS = 8
S_PF = 12
S_WQ, S_WG, S_WU = 16, 20, 24
S_A = 28
S_PITCH, S_PFBASE, S_PFIDX, S_N, S_NP2, S_P0, S_Q0 = 32, 33, 34, 35, 36, 37, 38
S_W = 39
S_SLOT = 41
S_CUR = 42
S_AOFF = 43
S_ST = 44
S_T = 48
S_RB = 57
S_OUTB = 58
S_C1, S_C2, S_C3 = 60, 61, 62
S_GP = 63
S_FAR = 80
S_MID = 86
OOB = 0x7ff00000

def acc(nt, rt, base=V_ACC): return base + (nt * 4 + rt) * 4
def afrag(rt, ks): return (rt * 16 + ks) * 4
def flat(items):
    out = []
    for it in items:
        if isinstance(it, (list, tuple)): out += list(it)
        else: out.append(it)
    return out

def far_desc(typ):
    FC, FP = S_FAR + 4, S_FAR + 5
    if typ == "kv":
        L = [[f"s_add_u32 s{S_T}, s{S_Q0}, s{S_PFIDX}", f"s_lshl_b32 s{S_T}, s{S_T}, 7"]]
    else:
        L = [
        [f"s_lshr_b32 s{S_T}, s{S_PFIDX}, 1", f"s_add_u32 s{S_T}, s{S_T}, s{S_P0}"],
        [f"s_bitcmp1_b32 s{S_PFIDX}, 0", f"s_cselect_b32 s{S_T+2}, s{S_WU}, s{S_WG}", f"s_cselect_b32 s{S_T+3}, s{S_WU+1}, s{S_WG+1}"],
        [f"s_sub_u32 s{S_T+1}, s{S_PFIDX}, s{S_NP2}", f"s_add_u32 s{S_T+1}, s{S_T+1}, s{S_Q0}"],
        [f"s_cmp_lt_u32 s{S_PFIDX}, s{S_NP2}", f"s_cselect_b32 s{S_T}, s{S_T}, s{S_T+1}", f"s_cselect_b32 s{S_FAR}, s{S_T+2}, s{S_WQ}"],
        [f"s_cmp_lt_u32 s{S_PFIDX}, s{S_NP2}", f"s_cselect_b32 s{S_FAR+1}, s{S_T+3}, s{S_WQ+1}", f"s_cselect_b32 s{S_FAR+2}, s{S_WG+2}, s{S_WQ+2}"],
        [f"s_cmp_lt_u32 s{S_PFIDX}, s{S_NP2}", f"s_cselect_b32 s{FP}, s{S_GP}, {H*D*2}"],
        f"s_lshl_b32 s{S_T}, s{S_T}, 7"]
    L += [[f"s_cmp_lt_u32 s{S_PFIDX}, s{S_N}", f"s_cselect_b32 s{FC}, s{S_T}, {OOB:#x}", f"s_add_u32 s{S_PFIDX}, s{S_PFIDX}, 1"]]
    return L
def touch():
    FC, FP = S_FAR + 4, S_FAR + 5
    return [[f"v_mad_u32_u24 v{V_TV}, v{V_TROW}, s{FP}, v{V_TCOL}", f"buffer_load_dword v20, v{V_TV}, {s(S_FAR,4)}, s{FC} offen{NTT}"]]
def shift_desc(typ):
    FC, FP = S_FAR + 4, S_FAR + 5
    src = [S_MID, S_MID+1, S_MID+2, S_MID+3, S_MID+4] if TD == 2 else [S_FAR, S_FAR+1, S_FAR+2, FC, FP]
    L = []
    if typ != "kv":
        L += [[f"s_mov_b32 s{S_PF}, s{src[0]}", f"s_mov_b32 s{S_PF+1}, s{src[1]}"], [f"s_mov_b32 s{S_PF+2}, s{src[2]}", f"s_mov_b32 s{S_PITCH}, s{src[4]}"]]
    L += [[f"s_lshl_b32 s{S_T+1}, s{S_W}, 6", f"s_mul_i32 s{S_T+1}, s{S_T+1}, s{S_PITCH}"], f"s_add_u32 s{S_PFBASE}, s{src[3]}, s{S_T+1}"]
    if TD == 2:
        if typ != "kv":
            L += [[f"s_mov_b32 s{S_MID}, s{S_FAR}", f"s_mov_b32 s{S_MID+1}, s{S_FAR+1}"], [f"s_mov_b32 s{S_MID+2}, s{S_FAR+2}", f"s_mov_b32 s{S_MID+4}, s{FP}"]]
        L += [f"s_mov_b32 s{S_MID+3}, s{FC}"]
    if typ != "kv": L += pitch_consts()
    return L
def pitch_consts():
    return [
        [f"s_lshl_b32 s{S_C1}, s{S_PITCH}, 4", f"s_lshl_b32 s{S_C2}, s{S_PITCH}, 2"],
        [f"s_add_u32 s{S_C3}, s{S_C1}, s{S_C2}", f"s_sub_u32 s{S_C1}, s{S_C1}, 1024"],
        [f"s_sub_u32 s{S_C2}, s{S_C2}, 2048", f"s_sub_u32 s{S_C3}, s{S_C3}, 3072"],
        [f"v_mad_u32_u24 v{V_DMA}, v{V_ROWL}, s{S_PITCH}, v{V_COLP}", f"v_add_u32 v{V_DMA+1}, s{S_C1}, v{V_DMA}"],
        [f"v_add_u32 v{V_DMA+2}, s{S_C2}, v{V_DMA}", f"v_add_u32 v{V_DMA+3}, s{S_C3}, v{V_DMA}"],
    ]
def dma_group(khalf, kk, tag=""):
    rows = 256 * khalf + 32 * kk
    setup = [[f"s_mul_i32 s{S_T+4}, s{S_PITCH}, {rows}" if rows else f"s_mov_b32 s{S_T+4}, 0",
             f"s_add_u32 m0, s{S_SLOT}, {khalf*32768 + kk*4096}"],
             f"s_add_u32 s{S_T+4}, s{S_T+4}, s{S_PFBASE}"]
    d = [f"buffer_load_dwordx4 v{V_DMA+i}, {s(S_PF,4)}, s{S_T+4} offen offset:{1024*i}{NT} lds{tag}" for i in range(4)]
    return setup, d
def tr_reads(khalf, nt, buf):
    return [f"ds_read_b64_tr_b16 {v(V_B + buf*32 + ks*4 + j*2, 2)}, v{V_TR+nt} offset:{khalf*32768 + ks*4096 + j*2048}" for ks in range(8) for j in range(2)]
def mfma_block(typ, khalf, nt, accbase):
    L = []
    buf = nt % 2
    for rt in range(4):
        for ks in range(8):
            d = v(acc(nt, rt, accbase), 4)
            c = "0" if (khalf == 0 and ks == 0) else d
            w = v(V_B + buf*32 + ks*4, 4)
            t = a(afrag(rt, 8*khalf + ks), 4)
            if typ == "V": L.append(f"v_mfma_f32_16x16x32_bf16 {d}, {t}, {w}, {c}")
            else: L.append(f"v_mfma_f32_16x16x32_bf16 {d}, {w}, {t}, {c}")
    return L
def epi_pair(typ, t0, t1, g0, g1, pk, voff, sbase, imm, rt=0):
    L = []
    srcs = [t0 + r for r in range(4)] + [t1 + r for r in range(4)]
    if typ == "Q":
        for r in srcs: L.append(f"v_mul_f32 v{r}, v{V_RQ+rt}, v{r}")
    if typ == "U":
        gs = [g0 + r for r in range(4)] + [g1 + r for r in range(4)]
        for r, g in zip(srcs, gs): L.append(f"v_mul_f32 v{r}, v{g}, v{r}")
    for i in range(4):
        L.append(f"v_cvt_pk_bf16_f32 v{pk+i}, v{srcs[2*i]}, v{srcs[2*i+1]}")
    st = f"buffer_store_dwordx4 {v(pk,4)}, v{voff}, {s(S_WS,4)}, s{sbase} offen offset:{imm}{STM}"
    return L, st
def pair_epi(typ, idx, pk, sb):
    if typ in ("Q", "K", "U"):
        pi_, rt = idx // 4, idx % 4
        t0, t1 = acc(2*pi_, rt), acc(2*pi_+1, rt)
        g0, g1 = acc(2*pi_, rt, V_ACCG), acc(2*pi_+1, rt, V_ACCG)
        if typ == "U": return epi_pair(typ, t0, t1, g0, g1, pk, V_STH, sb + rt, pi_*1024)
        rto = 256 if typ == "Q" else 128
        return epi_pair(typ, t0, t1, 0, 0, pk, V_ST, sb + rt//2, pi_*2048 + (rt%2)*rto, rt)
    nt, rp = idx // 2, idx % 2
    return epi_pair(typ, acc(nt, 2*rp), acc(nt, 2*rp+1), 0, 0, pk, V_ST, sb + rp, (nt%2)*256 + (nt//2)*2048)
def two_pairs(typ, i0, i1, sb, g0=2):
    st = []
    for n, idx in enumerate((i0, i1)):
        L, s_ = pair_epi(typ, idx, V_PK + 4*(idx % 4), sb)
        a0 = g0 + n*14
        st.append((L, a0, a0 + 13))
        st.append(([s_], a0 + 14, a0 + 15))
    return st
def carried(typ):
    return {"Q": [4, 5, 6, 7], "K": [4, 5, 6, 7], "U": [4, 5, 6, 7], "V": [6, 7], "G": []}[typ]
def flush(k, typ):
    k("s_nop 7")
    for idx in carried(typ):
        L, s_ = pair_epi(typ, idx, V_PK + 4*(idx % 4), S_ST)
        for l in L: k(l)
        k(s_)
def relu_ops(nt):
    L = []
    for rt in range(4):
        for r in range(4):
            g = acc(nt, rt, V_ACCG) + r
            L += [f"v_max_f32 v{g}, 0, v{g}", f"v_mul_f32 v{g}, v{V_R2+rt}, v{g}"]
    return L

NWAIT = {}
VMSEQ = {}
def compute_waits():
    global VMSEQ
    seq = {}
    for typ, wg, prev in (("K","kv","K"), ("V","kv","V"), ("G","qgu","U"), ("U","qgu",None), ("Q","qgu","Q")):
        VMSEQ = {}
        chunk_body(K("tmp"), typ, wg, prev)
        seq[typ] = VMSEQ[typ]
    preds = {"K": ["K"], "V": ["V"], "G": ["U"], "U": ["G"], "Q": ["Q", "U"]}
    for typ in seq:
        for bar, lastblk, pro in ((3, 2, 8 + 2 + 1), (7, 6, 2 + 1)):
            own = 0
            for b, x in seq[typ]:
                if x == "BAR":
                    if b == bar: break
                    continue
                own += 1
            cands = [] if typ == "U" else [pro]
            for p in preds[typ]:
                ops = [(b, x) for b, x in seq[p] if x != "BAR"]
                last = max(i for i, (b, x) in enumerate(ops) if x is True and b == lastblk)
                cands.append(len(ops) - 1 - last)
            NWAIT[(typ, bar)] = own + min(cands)
def chunk_body(k, typ, wgtype, prev):
    accbase = V_ACCG if typ == "G" else V_ACC
    sb = []
    if typ in ("K", "V", "Q"):
        tstr = 8192 if typ == "Q" else 16384
        sb += [f"s_add_u32 s{S_T+5}, s{S_Q0}, s{S_CUR}"]
        if wgtype == "qgu": sb += [f"s_sub_u32 s{S_T+5}, s{S_T+5}, s{S_NP2}"]
        sb += [f"s_lshr_b32 s{S_T+6}, s{S_T+5}, 1",
               f"s_mul_i32 s{S_T+6}, s{S_T+6}, {64*tstr}",
               f"s_and_b32 s{S_T+5}, s{S_T+5}, 1",
               f"s_lshl_b32 s{S_T+5}, s{S_T+5}, 12",
               f"s_add_u32 s{S_T+6}, s{S_T+6}, s{S_T+5}",
               f"s_add_u32 s{S_ST}, s{S_T+6}, s{S_OUTB}",
               f"s_add_u32 s{S_ST+1}, s{S_ST}, {tstr}"]
    if typ == "U":
        sb += [f"s_lshr_b32 s{S_T+5}, s{S_CUR}, 1",
               f"s_add_u32 s{S_T+5}, s{S_T+5}, s{S_P0}",
               f"s_lshl_b32 s{S_T+5}, s{S_T+5}, 11",
               f"s_add_u32 s{S_ST}, s{S_T+5}, s{S_OUTB+1}"]
        for rt in range(1, 4):
            sb += [f"s_add_u32 s{S_ST+rt}, s{S_ST}, {rt*KS3*1024}"]
    for b in range(8):
        khalf, nt = b // 4, b % 4
        streams = []
        spine = mfma_block(typ, khalf, nt, accbase)
        fixed = {}
        spine[0] = ["s_waitcnt lgkmcnt(0)", spine[0]]
        if nt == 3:
            fixed[0] = [f"s_waitcnt vmcnt({NWAIT.get((typ, b), 16)})", "s_barrier"]
        rd = tr_reads((b+1) // 4, (b+1) % 4, (b+1) % 2) if b < 7 else tr_reads(0, 0, 0)
        streams.append((rd, 1, 25))
        if b == 6:
            streams.append(([f"v_xor_b32 v{V_TR+i}, 0x10000, v{V_TR+i}" for i in range(4)], 26, 30))
        if b == 3:
            streams.append((shift_desc(wgtype), 1, 19))
        if b == 4:
            streams.append((far_desc(wgtype), 1, 26))
            streams.append((touch(), 28, 29))
        grp = {3: (0,0), 4: (0,0), 5: (0,1), 6: (0,1), 7: (1,0), 0: (1,0), 1: (1,1), 2: (1,1)}[b]
        su, dd = dma_group(*grp)
        if b % 2 == 1:
            streams.append((su, 20, 23))
            streams.append((dd[:2], 24, 31))
        else:
            streams.append((dd[2:], 8, 24))
        if b == 2:
            streams.append(([f"s_xor_b32 s{S_SLOT}, s{S_SLOT}, 0x10000"], 30, 31))
            streams.append((sb, 1, 20))
        if prev and b in (0, 1):
            c = carried(prev)
            if len(c) == 4: streams += two_pairs(prev, c[2*b], c[2*b+1], S_ST, 3 if b == 0 else 2)
            elif len(c) == 2 and b == 0: streams += two_pairs(prev, c[0], c[1], S_ST, 3)
        if typ in ("Q", "K", "U") and b in (6, 7):
            streams += two_pairs(typ, 2*(b-6), 2*(b-6)+1, S_ST, 3)
        if typ == "V" and b >= 5:
            streams += two_pairs(typ, 2*(nt-1), 2*(nt-1)+1, S_ST, 3)
        if typ == "G" and b >= 5: streams.append((relu_ops(nt-1), 4, 31))
        if typ == "U" and b == 0: streams.append((relu_ops(3), 4, 31))
        for l in merge2(spine, streams, fixed):
            k(l)
            if l.startswith("buffer_"): VMSEQ.setdefault(typ, []).append((b, "lds" in l))
            if l == "s_barrier": VMSEQ.setdefault(typ, []).append((b, "BAR"))
    k.stamp()
    k(f"s_add_u32 s{S_CUR}, s{S_CUR}, 1")

def bf16r(k, r, t):
    k(f"v_cvt_pk_bf16_f32 v{t}, v{r}, v{r}")
    k(f"v_lshlrev_b32 v{r}, 16, v{t}")
def red4g(k, r, t):
    for op in ("v_permlane16_swap_b32", "v_permlane32_swap_b32"):
        k(f"v_mov_b32 v{t}, v{r}")
        k("s_nop 1")
        k(f"{op} v{r}, v{t}")
        k("s_nop 1")
        k(f"v_add_f32 v{r}, v{r}, v{t}")

def gen_k1(name="proj"):
    import ag
    pf, ag.PROFILE = ag.PROFILE, False
    compute_waits()
    ag.PROFILE = pf
    k = K(name + "_kernel")
    E = f"L_{name}_end"
    k("s_cmp_ge_u32 s2, 256")
    k(f"s_cbranch_scc1 {E}")
    k("s_load_dwordx4 s[92:95], s[0:1], 0")
    k("s_load_dwordx2 s[66:67], s[0:1], 16")
    k("s_load_dwordx4 s[68:71], s[0:1], 24")
    k("s_load_dwordx4 s[72:75], s[0:1], 56")
    k("s_load_dwordx2 s[78:79], s[0:1], 96")
    k.prof_init(250, 96)
    k.stamp()
    k("v_lshrrev_b32 v1, 6, v0")
    k("v_and_b32 v0, 63, v0")
    k(f"v_readfirstlane_b32 s{S_W}, v1")
    k("v_lshrrev_b32 v16, 3, v0")
    k("v_and_b32 v17, 3, v16")
    k("v_lshrrev_b32 v18, 2, v16")
    k(f"v_lshl_add_u32 v{V_ROWL}, v18, 3, v17")
    k("v_and_b32 v17, 7, v0")
    k("v_and_b32 v18, 6, v16")
    k("v_xor_b32 v17, v17, v18")
    k(f"v_lshlrev_b32 v{V_COLP}, 4, v17")
    k(f"v_lshlrev_b32 v{V_STH}, 4, v0")
    k("s_and_b32 s3, s2, 7")
    k("s_lshr_b32 s4, s2, 3")
    k("s_and_b32 s5, s3, 1")
    k("s_lshl_b32 s5, s5, 2")
    k("s_and_b32 s6, s4, 3")
    k(f"s_add_u32 s{S_RB}, s5, s6")
    k("s_lshl_b32 s5, s6, 7")
    k(f"s_lshl_b32 s6, s{S_W}, 5")
    k("s_add_u32 s5, s5, s6")
    k(f"v_lshrrev_b32 v{V_TROW}, 1, v0")
    k(f"v_add_u32 v{V_TROW}, s5, v{V_TROW}")
    k(f"v_and_b32 v{V_TCOL}, 1, v0")
    k(f"v_mul_u32_u24 v{V_TCOL}, 96, v{V_TCOL}")
    k("s_bfe_u32 s5, s3, 0x10001")
    k("s_lshl_b32 s5, s5, 3")
    k("s_lshr_b32 s6, s4, 2")
    k("s_add_u32 s7, s5, s6")
    k(f"s_lshl_b32 s{S_SLOT}, s{S_W}, 13")
    k(f"s_mov_b32 s{S_CUR}, 0")
    k(f"s_mov_b32 s{S_PFIDX}, 0")
    k(f"s_lshl_b32 s5, s{S_RB}, 18")
    k(f"s_lshl_b32 s6, s{S_W}, 16")
    k(f"s_add_u32 s{S_AOFF}, s5, s6")
    k(f"s_lshl_b32 s40, s{S_W}, 15")
    k(f"s_add_u32 s40, s40, 32768")
    def emit(items):
        for l in flat(items): k(l)
    def unit(kh):
        for kk in range(2):
            su, dd = dma_group(kh, kk)
            emit(su + dd)
    def stage(rnd):
        for r4 in range(8):
            k(f"s_add_u32 m0, s40, {r4*4096}")
            k(f"s_add_u32 s{S_T+7}, s{S_AOFF}, {rnd*32768 + r4*4096}")
            for i in range(4):
                r = r4*4 + i
                k(f"v_xor_b32 v{16+i}, {(r & 15)*16}, v{V_STH}")
            for i in range(4):
                k(f"buffer_load_dwordx4 v{16+i}, {s(S_A,4)}, s{S_T+7} offen offset:{1024*i}{NTA} lds")
    def interleave(fa, fb, frac=0.7):
        save = k.L
        k.L = []; fa(); la = k.L
        k.L = []; fb(); lb = k.L
        k.L = save
        groups = []; cur = []
        for l in la:
            cur.append(l)
            if l.strip().startswith("buffer_"): groups.append(cur); cur = []
        if cur: groups.append(cur)
        n = int(len(lb) * frac); pos = 0
        for gi, g in enumerate(groups):
            tgt = gi * n // len(groups)
            k.L += lb[pos:tgt]; pos = tgt
            k.L += g
        k.L += lb[pos:]
    V_SR = 30
    sr = [30, 31, 240, 241]
    def start(wgtype):
        emit(far_desc(wgtype))
        if TD == 2:
            FC, FP = S_FAR+4, S_FAR+5
            emit([f"s_mov_b32 s{S_MID+i}, s{S_FAR+j}" for i, j in ((0,0),(1,1),(2,2),(3,4),(4,5))])
            emit(far_desc(wgtype))
            emit(shift_desc(wgtype))
        else:
            emit(shift_desc(wgtype))
        stage(0)
        k("s_bfe_u32 s4, s2, 0x30005")
        k("s_lshr_b32 s5, s4, 1")
        k("s_lshl_b32 s5, s5, 16")
        k("s_and_b32 s4, s4, 1")
        k("s_lshl_b32 s4, s4, 14")
        k("s_add_u32 s5, s5, s4")
        k(f"s_lshl_b32 s4, s{S_RB}, 18")
        k("s_add_u32 s5, s5, s4")
        k(f"s_lshl_b32 s4, s{S_W}, 12")
        k("s_add_u32 s5, s5, s4")
        k("s_add_u32 s5, s5, 32768")
        k("v_and_b32 v16, 31, v0")
        k("v_lshlrev_b32 v16, 7, v16")
        k(f"buffer_load_dword v20, v16, {s(S_A,4)}, s5 offen{NTT}")
        unit(0)
        k(f"v_mad_u32_u24 v{V_TV}, v{V_TROW}, s{S_PITCH}, v{V_TCOL}")
        k(f"s_lshl_b32 s{S_T+1}, s{S_W}, 6")
        k(f"s_mul_i32 s{S_T+1}, s{S_T+1}, s{S_PITCH}")
        k(f"s_sub_u32 s{S_T+1}, s{S_PFBASE}, s{S_T+1}")
        k(f"buffer_load_dword v20, v{V_TV}, {s(S_PF,4)}, s{S_T+1} offen{NTT}")
        emit(touch())
        ntouch = 3
        def wtouch():
            emit(far_desc(wgtype)); emit(touch())
        k("v_lshrrev_b32 v16, 4, v0")
        k("v_and_b32 v17, 15, v0")
        k(f"v_lshlrev_b32 v{V_ST}, 9, v16")
        k(f"v_lshl_add_u32 v{V_ST}, v17, 4, v{V_ST}")
        k("v_and_b32 v18, 8, v17")
        k(f"v_lshl_add_u32 v242, v18, 4, v{V_ST}")
        k("v_xor_b32 v18, v16, v17")
        k("v_lshlrev_b32 v18, 4, v18")
        k("v_lshl_add_u32 v18, v17, 10, v18")
        k("v_add_u32 v18, s40, v18")
        for i in range(4): k(f"v_xor_b32 v{sr[i]}, {i*64}, v18")
        k("v_lshrrev_b32 v16, 5, v0")
        k("v_bfe_u32 v17, v0, 2, 3")
        k("v_and_b32 v19, 3, v0")
        k("v_lshlrev_b32 v18, 10, v16")
        k("v_lshl_add_u32 v18, v17, 7, v18")
        k("v_lshl_add_u32 v18, v19, 3, v18")
        k("v_lshrrev_b32 v19, 1, v17")
        k("v_lshl_add_u32 v18, v19, 5, v18")
        for nt in range(4): k(f"v_xor_b32 v{V_TR+nt}, {nt*32}, v18")
        for i in range(4): k(f"s_mov_b32 s{S_ST+i}, {OOB:#x}")
        def rd(rtl, dst):
            for ks in range(16):
                k(f"ds_read_b128 {dst(ks)}, v{sr[ks & 3]} offset:{rtl*16384 + (ks >> 2)*256}")
        ONE = 224
        def ln2(rt0):
            Rs = (V_ACC, V_ACCG); D_ = (228, 232); NM_ = (236, 237); DM_ = (238, 239)
            for ks in range(16):
                for h_ in range(2):
                    k(f"v_mfma_f32_16x16x32_bf16 {v(D_[h_],4)}, {v(ONE,4)}, {v(Rs[h_]+4*ks,4)}, {'0' if ks == 0 else v(D_[h_],4)}")
            k("s_nop 7")
            for h_ in range(2): k(f"v_mul_f32 v{D_[h_]}, {1.0/512!r}, v{D_[h_]}")
            for h_ in range(2): k(f"v_cvt_pk_bf16_f32 v{D_[h_]+1}, v{D_[h_]}, v{D_[h_]}")
            for h_ in range(2): k(f"v_lshlrev_b32 v{D_[h_]+1}, 16, v{D_[h_]+1}")
            for h_ in range(2):
                k(f"v_sub_f32 v{DM_[h_]}, v{D_[h_]}, v{D_[h_]+1}")
                k(f"v_sub_f32 v{NM_[h_]}, 0, v{D_[h_]+1}")
            for h_ in range(2):
                R_ = Rs[h_]
                T_ = 32
                for ks in range(16 + 1):
                    if ks < 16:
                        tb = T_ + 8*(ks % 2)
                        for r in range(4):
                            k(f"v_dot2_f32_bf16 v{tb+2*r}, v{R_+4*ks+r}, s{S_T+5}, v{NM_[h_]}")
                            k(f"v_dot2_f32_bf16 v{tb+2*r+1}, v{R_+4*ks+r}, s{S_T+6}, v{NM_[h_]}")
                    if ks > 0:
                        p = ks - 1
                        tb = T_ + 8*(p % 2)
                        if ks == 16: k("s_nop 2")
                        for r in range(4):
                            k(f"v_cvt_pk_bf16_f32 v{R_+4*p+r}, v{tb+2*r}, v{tb+2*r+1}")
                    if ks > 1:
                        p = ks - 2
                        k(f"v_mfma_f32_16x16x32_bf16 {v(D_[h_],4)}, {v(R_+4*p,4)}, {v(R_+4*p,4)}, {'0' if p == 0 else v(D_[h_],4)}")
                        for r in range(4): k(f"v_accvgpr_write_b32 a{afrag(rt0+h_,p)+r}, v{R_+4*p+r}")
                for r in range(4): k(f"v_accvgpr_write_b32 a{afrag(rt0+h_,15)+r}, v{R_+60+r}")
                k(f"v_mfma_f32_16x16x32_bf16 {v(D_[h_],4)}, {v(R_+60,4)}, {v(R_+60,4)}, {v(D_[h_],4)}")
            k("s_nop 7")
            for h_ in range(2):
                sm, t = 243 + 2*h_, 244 + 2*h_
                k(f"v_cndmask_b32_e64 v{sm}, 0, v{D_[h_]}, s[70:71]")
                for r in range(1, 4): k(f"v_cndmask_b32_e64 v{sm}, v{sm}, v{D_[h_]+r}, s[{70+2*r}:{71+2*r}]")
                red4g(k, sm, t)
                k(f"v_mul_f32 v{sm}, {1.0/512!r}, v{sm}")
                k(f"v_fma_f32 v{sm}, -v{DM_[h_]}, v{DM_[h_]}, v{sm}")
                k(f"v_max_f32 v{sm}, 0, v{sm}")
                bf16r(k, sm, t)
                k(f"v_add_f32 v{sm}, 0x3727c5ac, v{sm}")
                bf16r(k, sm, t)
                k(f"v_sqrt_f32 v{sm}, v{sm}")
                k("s_nop 0")
                bf16r(k, sm, t)
                k(f"v_rcp_f32 v{sm}, v{sm}")
                k("s_nop 0")
                k(f"v_mul_f32 v{V_RQ+rt0+h_}, {f32hex(QSCALE)}, v{sm}")
                k(f"v_mul_f32 v{V_R2+rt0+h_}, v{sm}, v{sm}")
        if wgtype != "kv":
            k(f"s_mov_b32 s{S_T+5}, 0x00003f80")
            k(f"s_mov_b32 s{S_T+6}, 0x3f800000")
            for i in range(4): k(f"v_mov_b32 v{ONE+i}, 0x3f803f80")
            k("v_and_b32 v16, 15, v0")
            k("v_lshrrev_b32 v17, 4, v0")
            k("v_lshlrev_b32 v17, 2, v17")
            k("v_sub_u32 v16, v16, v17")
            for r in range(4): k(f"v_cmp_eq_u32_e64 s[{70+2*r}:{71+2*r}], {r}, v16")
        k.stamp()
        k(f"s_waitcnt vmcnt({8 + ntouch})")
        k.stamp()
        if wgtype == "kv":
            rd(0, lambda ks: a(afrag(0, ks), 4)); rd(1, lambda ks: a(afrag(1, ks), 4))
            k("s_waitcnt lgkmcnt(0)")
            k.stamp()
            stage(1)
            wtouch()
            k.stamp()
            k("s_waitcnt vmcnt(1)")
            k.stamp()
            rd(0, lambda ks: a(afrag(2, ks), 4)); rd(1, lambda ks: a(afrag(3, ks), 4))
            k("s_waitcnt lgkmcnt(0)")
        else:
            rd(0, lambda ks: v(V_ACC + 4*ks, 4)); rd(1, lambda ks: v(V_ACCG + 4*ks, 4))
            k("s_waitcnt lgkmcnt(0)")
            interleave(lambda: (stage(1), wtouch()), lambda: ln2(0))
            k("s_waitcnt vmcnt(1)")
            k.stamp()
            rd(0, lambda ks: v(V_ACC + 4*ks, 4)); rd(1, lambda ks: v(V_ACCG + 4*ks, 4))
            k("s_waitcnt lgkmcnt(0)")
        k.stamp()
        k("s_barrier")
        k.stamp()
        def wrest():
            unit(1)
            emit(shift_desc(wgtype))
            k(f"s_xor_b32 s{S_SLOT}, s{S_SLOT}, 0x10000")
            unit(0)
            su, dd = dma_group(1, 0)
            emit(su + dd[:2])
            emit(far_desc(wgtype)); emit(touch())
        if wgtype != "kv": interleave(wrest, lambda: ln2(2))
        else: wrest()
        k.stamp()
        for l in tr_reads(0, 0, 0): k(l)
    k("s_cmp_lt_u32 s3, 4")
    k(f"s_cbranch_scc1 L_{name}_qgu")
    k("s_and_b32 s5, s7, 7")
    k(f"s_lshl_b32 s{S_Q0}, s5, 3")
    k(f"s_mov_b32 s{S_N}, 8")
    k(f"s_mov_b32 s{S_NP2}, 0")
    k(f"s_mov_b32 s{S_PITCH}, {H*D*2}")
    k(f"s_mov_b32 s{S_FAR+5}, {H*D*2}")
    emit(pitch_consts())
    k(f"s_lshl_b32 s5, s{S_RB}, 3")
    k(f"s_lshl_b32 s6, s{S_W}, 1")
    k("s_add_u32 s5, s5, s6")
    k("s_lshl_b32 s5, s5, 14")
    k(f"s_add_u32 s{S_OUTB}, s5, {KV_OFF}")
    k("s_waitcnt lgkmcnt(0)")
    k("s_cmp_ge_u32 s7, 8")
    k("s_cselect_b32 s64, s70, s68")
    k("s_cselect_b32 s65, s71, s69")
    k.srd(S_PF, 64, M*H*D*2)
    k.srd(S_FAR, 64, M*H*D*2)
    k.srd(S_A, 94, S*M*2)
    k.srd(S_WS, 78, WS_USED)
    start("kv")
    k("s_cmp_ge_u32 s7, 8")
    k(f"s_cbranch_scc1 L_{name}_v")
    k(f"v_mov_b32 v{V_ST}, v242")
    k.label(f"L_{name}_kloop")
    chunk_body(k, "K", "kv", "K")
    k(f"s_cmp_lt_u32 s{S_CUR}, s{S_N}")
    k(f"s_cbranch_scc1 L_{name}_kloop")
    flush(k, "K")
    k(f"s_branch {E}f")
    k.label(f"L_{name}_v")
    k(f"s_add_u32 s{S_OUTB}, s{S_OUTB}, 8192")
    k.label(f"L_{name}_vloop")
    chunk_body(k, "V", "kv", "V")
    k(f"s_cmp_lt_u32 s{S_CUR}, s{S_N}")
    k(f"s_cbranch_scc1 L_{name}_vloop")
    flush(k, "V")
    k(f"s_branch {E}f")
    k.label(f"L_{name}_qgu")
    k(f"s_mov_b32 s{S_GP}, {F*2}")
    k(f"s_mul_i32 s{S_P0}, s7, 3")
    k(f"s_sub_u32 s5, s7, 8")
    k(f"s_min_u32 s6, s5, 4")
    k(f"s_mul_i32 s4, s5, 6")
    k(f"s_add_u32 s4, s4, s6")
    k(f"s_add_u32 s4, s4, 12")
    k(f"s_cmp_lt_u32 s5, 4")
    k(f"s_cselect_b32 s6, 7, 6")
    k(f"s_cmp_lt_u32 s7, 8")
    k(f"s_cselect_b32 s{S_Q0}, s7, s4")
    k(f"s_cselect_b32 s{S_N}, 7, s6")
    k(f"s_cselect_b32 s{S_NP2}, 6, 0")
    k(f"s_cmp_eq_u32 s7, 7")
    k(f"s_cselect_b32 s{S_NP2}, 2, s{S_NP2}")
    k(f"s_lshl_b32 s5, s{S_RB}, 3")
    k(f"s_lshl_b32 s6, s{S_W}, 1")
    k("s_add_u32 s5, s5, s6")
    k("s_lshl_b32 s6, s5, 13")
    k(f"s_add_u32 s{S_OUTB}, s6, {QF_OFF}")
    k(f"s_mul_i32 s6, s5, {2*KS3*1024}")
    k(f"s_add_u32 s{S_OUTB+1}, s6, {AF_OFF + 128*1024}")
    k("s_waitcnt lgkmcnt(0)")
    k.srd(S_WS, 78, WS_USED)
    k.srd(S_A, 92, S*M*2)
    k.srd(S_WQ, 66, M*H*D*2)
    k.srd(S_WG, 72, M*F*2)
    k.srd(S_WU, 74, M*F*2)
    k.srd(S_PF, 66, M*H*D*2)
    k.srd(S_FAR, 66, M*H*D*2)
    start("qgu")
    k(f"s_cmp_eq_u32 s{S_NP2}, 0")
    k(f"s_cbranch_scc1 L_{name}_qloop")
    k.label(f"L_{name}_guloop")
    chunk_body(k, "G", "qgu", "U")
    chunk_body(k, "U", "qgu", None)
    k(f"s_cmp_lt_u32 s{S_CUR}, s{S_NP2}")
    k(f"s_cbranch_scc1 L_{name}_guloop")
    flush(k, "U")
    for i in range(2): k(f"s_mov_b32 s{S_ST+i}, {OOB:#x}")
    k.label(f"L_{name}_qloop")
    chunk_body(k, "Q", "qgu", "Q")
    k(f"s_cmp_lt_u32 s{S_CUR}, s{S_N}")
    k(f"s_cbranch_scc1 L_{name}_qloop")
    flush(k, "Q")
    k.label(E + "f")
    if os.environ.get("PROF"): k("s_waitcnt vmcnt(0)")
    k.stamp()
    k.prof_flush(S_WS, 1, S_W, 0)
    k.label(E)
    k("s_endpgm")
    return k, 512, 256, 102, f"; @launch kernel={name}_kernel grid=(256,1,1) block=(256,1,1) lds=163840"

if __name__ == "__main__":
    import hz
    k = gen_k1()[0]
    print(NWAIT)
    hz.check(hz.trace(k.L, {"L_proj_kloop": [True, True]}), "k1-K")
    hz.check(hz.trace(k.L, {"L_proj_v": [True], "L_proj_vloop": [True, True]}), "k1-V")
    hz.check(hz.trace(k.L, {"L_proj_qgu": [True], "L_proj_guloop": [True], "L_proj_qloop": [False, True]}), "k1-GUQ")
    hz.check(hz.trace(k.L, {"L_proj_qgu": [True], "L_proj_qloop": [True, True]}), "k1-Q")
```

```python
from ag import *
from layout import *
import os
TOUCH = not os.environ.get("K2_NOTOUCH")
A_K, A_V = 192, 224
V_E = 64
class T:
    def __init__(s_, O, Q, NM, L, THR, S, P): s_.O, s_.Q, s_.NM, s_.L, s_.THR, s_.S, s_.P = O, Q, NM, L, THR, S, P
TL = {
  "a": T(("a", 0),   ("a", 128), 96,  16, 19, 32, 80),
  "b": T(("a", 64),  ("a", 160), 112, 17, 20, 48, 88),
  "c": T(("v", 160), ("v", 128), 224, 18, 21, 32, 80),
}
def R(cb, off, n): return (a if cb[0] == "a" else v)(cb[1] + off, n)
V_SUM, V_SUM2, V_TM, V_NINF, V_LANEC = 22, 23, 24, 25, 26
V_L16, V_RK, V_RV, V_ST, V_L16B = 1, 2, 3, 4, 11
V_T = 240
S_WS = 8
S_W, S_P, S_HEAD = 12, 13, 14
S_SRC, S_DST, S_RSLOT, S_CNT = 16, 18, 19, 20
S_DA, S_DB = 21, 22
S_REG = 23
S_T = 24
S_KVB = 32
S_LIM = 34
S_XSRC, S_XDST = 35, 36
S_WLT2 = 37
S_STEP = 38
S_KSLOT = 39
S_MK = 40
S_RET = 48
S_STA, S_STB = 50, 51
S_SRC2, S_DST2, S_DA2, S_DB2, S_REG2 = 52, 53, 54, 55, 56
S_TW = 64
S_TROW, S_TCOL = 68, 69
V_TOUCH = 27
OOB = 0x7ff00000
THRV = "0x43800000"
NINF = "0xff800000"

def qk(x):
    t = TL[x]
    return [f"v_mfma_f32_32x32x16_bf16 {v(t.S,16)}, {a(A_K+4*s_,4)}, {R(t.Q,4*s_,4)}, {v(t.NM,16) if s_ == 0 else v(t.S,16)}" for s_ in range(8)]
def pv(x):
    t = TL[x]
    return [f"v_mfma_f32_32x32x16_bf16 {R(t.O,16*dt,16)}, {a(A_V+4*(2*dt+e),4)}, {v(t.P+4*e,4)}, {R(t.O,16*dt,16)}" for dt in range(4) for e in range(2)]
def cst(r):
    g, rr = r // 4, r % 4
    return 16*(g & 1) + 8*(g >> 1) + rr
def sm_core(x, sdelta=None):
    t = TL[x]; S_, P, E = t.S, t.P, V_E
    ex = [f"v_exp_f32 v{E+i}, v{S_+i}" for i in range(16)]
    def post(j):
        if j == 0: ad = [f"v_add_f32 v{V_SUM}, v{E}, v{E+1}"]
        elif j == 1: ad = [f"v_add_f32 v{V_SUM2}, v{E+2}, v{E+3}"]
        else: ad = [f"v_add_f32 v{V_SUM}, v{V_SUM}, v{E+2*j}", f"v_add_f32 v{V_SUM2}, v{V_SUM2}, v{E+2*j+1}"]
        return ad, [f"v_cvt_pk_bf16_f32 v{P+j}, v{E+2*j}, v{E+2*j+1}"]
    L = []
    if sdelta is None:
        L += ex[:2]
        for j in range(8):
            ad, cv = post(j)
            if j < 7: L += [ex[2*j+2]] + ad + [ex[2*j+3]] + cv
            else: L += ["s_nop 0"] + ad + cv
    else:
        cm = [f"v_cmp_le_i32_e64 {s(S_MK+2*(r%4),2)}, {cst(r)}, v{V_TM}" for r in range(16)]
        cn = [f"v_cndmask_b32_e64 v{S_+r}, v{V_NINF}, v{S_+r}, {s(S_MK+2*(r%4),2)}" for r in range(16)]
        L += [f"v_add_u32 v{V_TM}, s{sdelta}, v{V_LANEC}"] + cm[:3]
        def mk(r):
            return ([cm[r+3]] if r + 3 < 16 else []) + [cn[r]]
        L += mk(0) + mk(1) + [ex[0]] + mk(2) + [ex[1]] + mk(3)
        for j in range(8):
            ad, cv = post(j)
            if j < 7:
                L += [ex[2*j+2]] + (mk(2*j+4) if 2*j+4 < 16 else []) + ad + [ex[2*j+3]] + (mk(2*j+5) if 2*j+5 < 16 else []) + cv
            else: L += ["s_nop 0"] + ad + cv
    L += [f"v_add_f32 v{V_SUM}, v{V_SUM}, v{V_SUM2}"]
    return L

def sm_gaps(x, sdelta=None):
    t = TL[x]; S_, P, E = t.S, t.P, V_E
    G = [[] for _ in range(16)]
    ex = lambda i: f"v_exp_f32 v{E+i}, v{S_+i}"
    cv = lambda j: f"v_cvt_pk_bf16_f32 v{P+j}, v{E+2*j}, v{E+2*j+1}"
    egap = {0: 0, 1: 0, 2: 1, 3: 1}
    for i in range(4, 16): egap[i] = i - 2
    M_ = sdelta is not None
    if M_:
        cm = [f"v_cmp_le_i32_e64 {s(S_MK+2*(r%4),2)}, {cst(r)}, v{V_TM}" for r in range(16)]
        cn = [f"v_cndmask_b32_e64 v{S_+r}, v{V_NINF}, v{S_+r}, {s(S_MK+2*(r%4),2)}" for r in range(16)]
        G[0] += [f"v_add_u32 v{V_TM}, s{sdelta}, v{V_LANEC}", cm[0], cm[1], cm[2]]
    for i in range(16):
        g = egap[i]
        if M_: G[g] += ([cm[i+3]] if i + 3 < 16 else []) + [cn[i]]
        G[g].append(ex(i))
        if i >= 4 and i < 16:
            j = (i - 4) // 2 + (0)
            if i % 2 == 0:
                jj = (i - 4) // 2 + 1 if i > 4 else None
    A = lambda j: ([f"v_add_f32 v{V_SUM}, v{E}, v{E+1}"] if j == 0 else [f"v_add_f32 v{V_SUM2}, v{E+2}, v{E+3}"] if j == 1 else
                   [f"v_add_f32 v{V_SUM}, v{V_SUM}, v{E+2*j}", f"v_add_f32 v{V_SUM2}, v{V_SUM2}, v{E+2*j+1}"])
    G[2] += A(0) + [cv(0)]
    G[3] += A(1) + [cv(1)]
    for j in range(2, 7):
        G[2*j] += A(j)
        G[2*j+1] += [cv(j)]
    G[13] += [f"v_add_f32 v{V_SUM}, v{V_SUM}, v{V_SUM2}"]
    G[14] += [f"v_add_f32 v{V_SUM2}, v{E+14}, v{E+15}", cv(7), f"v_add_f32 v{V_SUM}, v{V_SUM}, v{V_SUM2}", f"v_cmp_gt_f32 vcc, v{V_SUM}, v{t.THR}"]
    return G

class Gen:
    def __init__(self, name):
        self.k = K(name + "_kernel"); self.name = name; self.sites = []; self.n = 0
    def check(self, x):
        self.n += 1
        lab = f"L_{self.name}_s{self.n}"
        t = TL[x]
        self.sites.append((lab, x))
        return [f"s_cbranch_vccnz {lab}", lab + "r:"]
    def ladd(self, x):
        return f"v_add_f32 v{TL[x].L}, v{TL[x].L}, v{V_SUM}"
    def asm_step(self, spine, vgaps, mem, sal, pre0=None, post=None):
        out = []
        for g in range(len(spine)):
            sp = spine[g]
            out += sp if isinstance(sp, list) else [sp]
            out += mem.get(g, []) + sal.get(g, []) + vgaps[g]
        self.emit(out + (post or []))
    def emit(self, lines):
        for l in lines:
            if l.endswith(":"): self.k.label(l[:-1])
            else: self.k(l)
    def slow(self, x):
        k = self.k
        tl = TL[x]
        S_, NM = tl.S, tl.NM
        t = V_T
        k.label(f"L_{self.name}_slow_{x}")
        k(f"v_max3_f32 v{t}, v{S_}, v{S_+1}, v{S_+2}")
        for i in range(3, 15, 2):
            k(f"v_max3_f32 v{t}, v{t}, v{S_+i}, v{S_+i+1}")
        k(f"v_max_f32 v{t}, v{t}, v{S_+15}")
        k(f"v_mov_b32 v{t+1}, v{t}")
        k(f"v_cmp_gt_f32_e64 {s(S_MK,2)}, 0, v{tl.THR}")
        k("s_nop 0")
        k(f"v_permlane32_swap_b32 v{t}, v{t+1}")
        k(f"v_mov_b32 v{t+3}, 0")
        k(f"v_mov_b32 v{t+2}, {THRV}")
        k(f"v_max_f32 v{t}, v{t}, v{t+1}")
        k(f"v_cndmask_b32_e64 v{t+1}, v{t+3}, v{V_NINF}, {s(S_MK,2)}")
        k(f"v_max_f32 v{t}, v{t}, v{t+1}")
        k(f"v_cmp_eq_f32 vcc, v{t}, v{V_NINF}")
        k("s_nop 1")
        k(f"v_cndmask_b32 v{t}, v{t}, v{t+3}, vcc")
        k(f"v_cndmask_b32 v{tl.THR}, v{t+2}, v{tl.THR}, vcc")
        k(f"v_sub_f32 v{t+2}, v{NM}, v{t}")
        for i in range(16):
            k(f"v_mov_b32 v{NM+i}, v{t+2}")
            k(f"v_sub_f32 v{S_+i}, v{S_+i}, v{t}")
        k(f"s_cmp_eq_u64 {s(S_MK,2)}, exec")
        k(f"s_cbranch_scc1 L_{self.name}_slow_{x}_n")
        k(f"v_max_f32 v{t+1}, 0, v{t}")
        k(f"v_exp_f32 v{t+1}, -v{t+1}")
        k("s_nop 7")
        k(f"v_mul_f32 v{tl.L}, v{tl.L}, v{t+1}")
        if tl.O[0] == "a":
            for i in range(0, 64, 4):
                for r in range(4): k(f"v_accvgpr_read_b32 v{t+4+r}, a{tl.O[1]+i+r}")
                for r in range(4): k(f"v_mul_f32 v{t+4+r}, v{t+4+r}, v{t+1}")
                for r in range(4): k(f"v_accvgpr_write_b32 a{tl.O[1]+i+r}, v{t+4+r}")
        else:
            for i in range(64): k(f"v_mul_f32 v{tl.O[1]+i}, v{tl.O[1]+i}, v{t+1}")
        k.label(f"L_{self.name}_slow_{x}_n")
        for l in sm_core(x): k(l)
        k("s_nop 1")
        k(f"s_setpc_b64 {s(S_RET,2)}")
    def tramps(self):
        k = self.k
        for lab, x in self.sites:
            k.label(lab)
            k(f"s_call_b64 {s(S_RET,2)}, L_{self.name}_slow_{x}")
            k(f"s_branch {lab}r")

    def body(self, kind, loop=None):
        phase = int(kind[1]); masked = kind[0] == "M"
        xa = "a" if phase == 1 else "c"
        xn = "c" if (phase == 2 or kind == "M1L") else "a"
        nv = 8 if phase == 1 else 16
        if kind == "M2L": nv = 3 if TOUCH else 0
        DM = lambda vo, so, i: f"buffer_load_dwordx4 v{vo}, {s(S_WS,4)}, s{so} offen offset:{1024*i} lds"
        rk = V_RK if kind == "M1L" else V_RV
        kr = [f"ds_read_b128 {a(A_K+4*i,4)}, v{rk} offset:{i*1024}" for i in range(8)]
        vr = [f"ds_read_b128 {a(A_V+4*i,4)}, v{V_RV} offset:{8192+i*1024}" for i in range(8)]
        vg = sm_gaps(xa, S_DA if masked else None)
        mem = {0: [f"s_waitcnt vmcnt({nv})", "s_barrier"]}
        if kind != "M2L":
            for i in range(8): mem[1+i] = [kr[i]]
        for i in range(6): mem[9+i] = [vr[i]]
        self.asm_step(qk("b") + pv("b"), vg, mem, {}, post=self.check(xa) + [self.ladd(xa)])
        vg = sm_gaps("b", S_DB if (masked and phase == 2) else None)
        mem = {0: [vr[6]], 1: [vr[7]]}
        sal = {}
        adv = [f"s_add_u32 m0, m0, {{}}", f"s_and_b32 m0, m0, 0x1ffff"]
        if phase == 1:
            sal[1] = [f"s_mov_b32 m0, s{S_DST}"]
            for i in range(4): mem[2+2*i if not masked else 2+i] = [DM(V_L16, S_SRC, i)]
            sal[3] = [f"s_add_u32 s{S_DST}, s{S_DST}, 32768"]
            sal[5] = [f"s_and_b32 s{S_DST}, s{S_DST}, 0x1ffff"]
            if not masked:
                sal[9] = [f"s_add_u32 s{S_SRC}, s{S_SRC}, 16384"]
            else:
                sal[6] = [f"s_mov_b32 m0, s{S_XDST}", f"s_add_u32 s{S_SRC}, s{S_SRC}, s{S_STEP}"]
                for i in range(4): mem[7+i] = [DM(V_L16, S_XSRC, i)]
                sal[7] = [f"s_mov_b32 s{S_STEP}, 0x8000"]
                sal[8] = [f"s_add_u32 s{S_XDST}, s{S_XDST}, 32768"]
                sal[9] = [f"s_and_b32 s{S_XDST}, s{S_XDST}, 0x1ffff"]
                sal[11] = [f"s_add_u32 s{S_XSRC}, s{S_XSRC}, 0x8000", f"s_sub_u32 s{S_DA}, s{S_DA}, 32"]
        elif not masked:
            sal[0] = [f"s_add_u32 m0, m0, {32768-4096}"]
            sal[1] = [f"s_and_b32 m0, m0, 0x1ffff"]
            for i in range(4): mem[2+i] = [DM(V_L16, S_SRC, i)]
            sal[6] = [f"s_add_u32 m0, m0, 4096"]
            for i in range(4): mem[8+i] = [DM(V_L16B, S_SRC, i)]
            sal[12] = [f"s_add_u32 s{S_SRC}, s{S_SRC}, 0x8000"]
        if kind == "M2":
            sal[2] = [f"s_sub_u32 s{S_DA}, s{S_DA}, 64"]
            sal[3] = [f"s_sub_u32 s{S_DB}, s{S_DB}, 64"]
            if TOUCH:
                for i in range(3):
                    mem[4+3*i] = [f"s_cmp_lt_u32 s{S_TROW}, 4096",
                          f"s_cselect_b32 s{S_TW}, s60, s62",
                          f"s_cselect_b32 s{S_TW+1}, s61, s63",
                          f"s_cselect_b32 s{S_TW+2}, {H*D*M*2:#x}, s72",
                          f"s_and_b32 s{S_T}, s{S_TROW}, 4095",
                          f"s_lshl_b32 s{S_T}, s{S_T}, 10",
                          f"s_add_u32 s{S_T}, s{S_T}, s{S_TCOL}",
                          f"buffer_load_dword v{V_TOUCH+1+i}, v{V_TOUCH}, {s(S_TW,4)}, s{S_T} offen",
                          f"s_add_u32 s{S_TROW}, s{S_TROW}, 16"]
        if kind == "M1L":
            vg[4] = vg[4] + [f"v_add_u32 v{V_RV}, s{S_REG2}, v{V_L16}"]
            sal[12] = [f"s_mov_b32 s{S_DA}, s{S_DA2}", f"s_mov_b32 s{S_SRC}, s{S_SRC2}"]
            sal[13] = [f"s_mov_b32 m0, s{S_DST2}"]
        elif kind != "M2L":
            vg[4] = vg[4] + [f"v_add_u32 v{V_RV}, 0x8000, v{V_RV}"]
            vg[6] = vg[6] + [f"v_and_b32 v{V_RV}, 0x1ffff, v{V_RV}"]
        post = self.check("b") + [self.ladd("b")]
        if loop:
            sal[13] = sal.get(13, []) + [f"s_sub_u32 s{S_CNT}, s{S_CNT}, 1"]
            post += [f"s_cmp_lg_u32 s{S_CNT}, 0", f"s_cbranch_scc1 {loop}"]
        if kind != "M2L":
            mf = qk(xn) + pv(xa)
            mf[0] = ["s_waitcnt lgkmcnt(6)", mf[0]]
            mf[8] = ["s_waitcnt lgkmcnt(0)", mf[8]]
            self.asm_step(mf, vg, mem, sal, post=post)
        else:
            mf = pv(xa)
            mf[0] = [vr[6], vr[7], "s_waitcnt lgkmcnt(7)", mf[0]]
            for i in range(1, 8): mf[i] = [f"s_waitcnt lgkmcnt({7-i})", mf[i]]
            vg2 = [vg[2*i] + vg[2*i+1] for i in range(8)]
            self.asm_step(mf, vg2, {}, {}, post=post)
        self.k.stamp()
    def halfsum(self, r, t):
        return [f"v_mov_b32 v{t}, v{r}", "s_nop 1", f"v_permlane32_swap_b32 v{r}, v{t}", "s_nop 1", f"v_add_f32 v{r}, v{r}, v{t}"]

def gen_k2(name="attn"):
    G = Gen(name); k = G.k
    E = f"L_{name}_end"
    k("s_cmp_ge_u32 s2, 256")
    k(f"s_cbranch_scc1 {E}")
    k("s_load_dwordx2 s[4:5], s[0:1], 96")
    k("s_load_dwordx2 s[60:61], s[0:1], 40")
    k("s_load_dwordx2 s[62:63], s[0:1], 72")
    k.prof_init(8, 90)
    k.stamp()
    k("v_lshrrev_b32 v5, 6, v0")
    k("v_and_b32 v0, 63, v0")
    k(f"v_readfirstlane_b32 s{S_W}, v5")
    k(f"v_lshlrev_b32 v{V_L16}, 4, v0")
    k("s_and_b32 s3, s2, 7")
    k("s_lshr_b32 s6, s2, 3")
    k("s_and_b32 s7, s6, 3")
    k("s_lshl_b32 s3, s3, 2")
    k(f"s_add_u32 s{S_HEAD}, s3, s7")
    k(f"s_lshr_b32 s{S_P}, s6, 2")
    k(f"s_lshl_b32 s{S_KVB}, s{S_HEAD}, 20")
    k(f"s_add_u32 s{S_KVB}, s{S_KVB}, {KV_OFF}")
    k(f"s_lshl_b32 s{S_T}, s{S_W}, 12")
    k(f"s_add_u32 s{S_T+1}, s{S_T}, s{S_KVB}")
    k(f"s_cmp_lt_u32 s{S_W}, 2")
    k(f"s_cselect_b32 s{S_WLT2}, 16384, 0")
    k(f"s_cselect_b32 s{S_T+2}, s{S_T+1}, {OOB:#x}")
    k(f"s_add_u32 m0, s{S_T}, {3*32768}")
    k(f"s_lshl_b32 s{S_T+3}, s{S_P}, 2")
    k(f"s_sub_u32 s{S_T+4}, 60, s{S_T+3}")
    k(f"s_add_u32 s{S_T+3}, s{S_T+3}, s{S_W}")
    k(f"s_xor_b32 s{S_T+5}, s{S_W}, 1")
    k(f"s_add_u32 s{S_T+5}, s{S_T+5}, s{S_T+4}")
    k(f"s_add_u32 s{S_T+4}, s{S_T+4}, s{S_W}")
    k(f"s_lshl_b32 s{S_T+6}, s{S_HEAD}, 19")
    k(f"s_add_u32 s{S_T+6}, s{S_T+6}, {QF_OFF}")
    k("s_waitcnt lgkmcnt(0)")
    k.stamp()
    k.srd(S_WS, 4, WS_USED)
    for i in range(4):
        k(f"buffer_load_dwordx4 v{V_L16}, {s(S_WS,4)}, s{S_T+2} offen offset:{1024*i} lds")
    def loadq(stile, x):
        k(f"s_lshl_b32 s{S_T+7}, s{stile}, 13")
        k(f"s_add_u32 s{S_T+7}, s{S_T+7}, s{S_T+6}")
        k(f"s_add_u32 s3, s{S_T+7}, 4096")
        for i in range(8): k(f"buffer_load_dwordx4 {R(TL[x].Q,4*i,4)}, v{V_L16}, {s(S_WS,4)}, s{S_T+7 if i < 4 else 3} offen offset:{1024*(i%4)}")
    loadq(S_T+3, "a")
    k(f"s_add_u32 s{S_SRC}, s{S_T+1}, s{S_WLT2}")
    k(f"s_mov_b32 s{S_DST}, s{S_T}")
    def unit():
        L = [f"s_mov_b32 m0, s{S_DST}", f"s_add_u32 s{S_DST}, s{S_DST}, 32768"]
        L += [f"buffer_load_dwordx4 v{V_L16}, {s(S_WS,4)}, s{S_SRC} offen offset:{1024*i} lds" for i in range(4)]
        L += [f"s_add_u32 s{S_SRC}, s{S_SRC}, 16384"]
        return L
    for l in unit(): k(l)
    loadq(S_T+4, "b")
    k(f"s_lshl_b32 s70, s{S_T+5}, 13")
    k(f"s_add_u32 s70, s70, s{S_T+6}")
    k(f"s_add_u32 s71, s70, 4096")
    k.stamp()
    for i in range(4): k(f"v_mov_b32 v{V_T+i}, 0")
    k("v_and_b32 v5, 31, v0")
    k("v_lshrrev_b32 v6, 5, v0")
    z = v(V_T, 4)
    for b in range(0, 128, 16): k(f"v_mfma_f32_32x32x16_bf16 {a(b,16)}, {z}, {z}, 0")
    for b in (A_V, A_V+16): k(f"v_mfma_f32_32x32x16_bf16 {a(b,16)}, {z}, {z}, 0")
    for b in (80, 96, 112, 160, 176, 192, 208, 224): k(f"v_mfma_f32_32x32x16_bf16 {v(b,16)}, {z}, {z}, 0")
    k("v_lshlrev_b32 v7, 2, v6")
    k(f"v_sub_u32 v{V_LANEC}, v5, v7")
    k("v_lshrrev_b32 v7, 4, v5")
    k(f"v_mul_u32_u24 v{V_ST}, {KS3*1024}, v7")
    k(f"v_lshl_add_u32 v{V_ST}, v6, 8, v{V_ST}")
    k("v_and_b32 v7, 15, v5")
    k(f"v_lshl_add_u32 v{V_ST}, v7, 4, v{V_ST}")
    k(f"v_mov_b32 v{V_NINF}, {NINF}")
    for x in "abc":
        k(f"v_mov_b32 v{TL[x].L}, 0")
        k(f"v_mov_b32 v{TL[x].THR}, -1.0")
    k(f"s_lshl_b32 s{S_T+7}, s{S_HEAD}, 12")
    k(f"s_add_u32 s{S_T+7}, s{S_T+7}, {AF_OFF}")
    k(f"s_mul_i32 s{S_STA}, s{S_T+3}, {2*KS3*1024}")
    k(f"s_add_u32 s{S_STA}, s{S_STA}, s{S_T+7}")
    k(f"s_mul_i32 s{S_STB}, s{S_T+4}, {2*KS3*1024}")
    k(f"s_add_u32 s{S_STB}, s{S_STB}, s{S_T+7}")
    k(f"s_lshl_b32 s{S_T+7}, s{S_P}, 16")
    k(f"s_add_u32 s{S_T+7}, s{S_T+7}, {3*16384}")
    k(f"s_add_u32 s{S_T+7}, s{S_T+7}, s{S_T+1}")
    k(f"s_lshl_b32 s{S_XSRC}, s{S_WLT2}, 1")
    k(f"s_add_u32 s{S_XSRC}, s{S_XSRC}, s{S_T+7}")
    k(f"s_add_u32 s{S_XDST}, s{S_T}, {16384 + 3*32768}")
    k(f"s_add_u32 s{S_STEP}, s{S_WLT2}, 16384")
    k(f"s_lshl_b32 s{S_DA}, s{S_W}, 5")
    k(f"s_and_b32 s{S_T}, s{S_W}, 1")
    k(f"s_lshl_b32 s{S_REG2}, s{S_T}, 14")
    k(f"s_add_u32 s{S_KSLOT}, s{S_REG2}, {3*32768}")
    k(f"s_lshr_b32 s{S_T+1}, s{S_W}, 1")
    k(f"s_lshl_b32 s{S_T+2}, s{S_P}, 2")
    k(f"s_sub_u32 s{S_T+3}, 64, s{S_T+2}")
    k(f"s_lshl_b32 s{S_T+3}, s{S_T+3}, 14")
    k(f"s_add_u32 s{S_LIM}, s{S_T+3}, s{S_KVB}")
    k(f"s_add_u32 s{S_T+2}, s{S_T+2}, s{S_T}")
    k(f"s_add_u32 s{S_T+2}, s{S_T+2}, 10")
    k(f"s_lshl_b32 s{S_T+2}, s{S_T+2}, 14")
    k(f"s_add_u32 s{S_T+2}, s{S_T+2}, s{S_KVB}")
    k(f"s_cmp_eq_u32 s{S_T+1}, 0")
    k(f"s_movk_i32 s{S_T+3}, 0x2000")
    k(f"s_cselect_b32 s{S_T+3}, 0x8000, s{S_T+3}")
    k(f"s_add_u32 s{S_SRC2}, s{S_T+2}, s{S_T+3}")
    k(f"s_lshl_b32 s{S_T+3}, s{S_T+1}, 13")
    k(f"s_add_u32 s{S_DST2}, s{S_T+3}, s{S_KSLOT}")
    k(f"s_sub_u32 s{S_DST2}, s{S_DST2}, {32768-4096}")
    k(f"s_xor_b32 s{S_T+3}, s{S_W}, 1")
    k(f"s_sub_u32 s{S_T+3}, s{S_T+3}, s{S_T}")
    k(f"s_lshl_b32 s{S_DA2}, s{S_T+3}, 5")
    k(f"s_sub_u32 s{S_T+3}, s{S_W}, s{S_T}")
    k(f"s_lshl_b32 s{S_DB}, s{S_T+3}, 5")
    k(f"s_lshr_b32 s{S_TROW}, s2, 3")
    k(f"s_lshl_b32 s{S_TROW}, s{S_TROW}, 2")
    k(f"s_add_u32 s{S_TROW}, s{S_TROW}, s{S_W}")
    k(f"s_mul_i32 s{S_TROW}, s{S_TROW}, 48")
    k(f"s_and_b32 s{S_TCOL}, s2, 1")
    k(f"s_lshl_b32 s{S_TCOL}, s{S_TCOL}, 9")
    k(f"v_lshrrev_b32 v5, 2, v0")
    k(f"v_and_b32 v6, 3, v0")
    k(f"v_lshlrev_b32 v{V_TOUCH}, 10, v5")
    k(f"v_lshl_add_u32 v{V_TOUCH}, v6, 7, v{V_TOUCH}")
    k(f"s_and_b32 s61, s61, 0xffff")
    k(f"s_and_b32 s63, s63, 0xffff")
    k(f"s_mov_b32 s{S_TW+3}, 0x00020000")
    k(f"s_mov_b32 s72, {F*M*2:#x}")
    k(f"v_add_u32 v{V_RK}, {3*32768}, v{V_L16}")
    k(f"v_add_u32 v{V_L16B}, 4096, v{V_L16}")
    k(f"v_mov_b32 v{V_SUM}, 0")
    for l in unit(): k(l)
    k.stamp()
    k(f"s_waitcnt vmcnt(16)")
    k.stamp()
    k("s_barrier")
    k.stamp()
    for i in range(8): k(f"ds_read_b128 {a(A_K+4*i,4)}, v{V_RK} offset:{i*1024}")
    k(f"v_add_u32 v{V_RK}, s{S_KSLOT}, v{V_L16}")
    k(f"v_mov_b32 v{V_RV}, v{V_L16}")
    k(f"s_lshl_b32 s{S_CNT}, s{S_P}, 2")
    u2 = unit()
    k(u2[0]); k(u2[1])
    for i, l in enumerate(qk("a")):
        k(f"s_waitcnt lgkmcnt({7-i})")
        k(l)
        if i < 5: k(u2[2+i])
    k.stamp()
    k("s_waitcnt vmcnt(8)")
    k("s_nop 7")
    k.stamp()
    k(f"s_cmp_eq_u32 s{S_CNT}, 0")
    k(f"s_cbranch_scc1 L_{name}_m1pre")
    k.label(f"L_{name}_n1")
    G.body("N1", f"L_{name}_n1")
    k.label(f"L_{name}_m1pre")
    k(f"s_mov_b32 s{S_CNT}, 3")
    for i in range(8): k(f"buffer_load_dwordx4 {R(TL['c'].Q,4*i,4)}, v{V_L16}, {s(S_WS,4)}, s{70 if i < 4 else 71} offen offset:{1024*(i%4)}")
    k.label(f"L_{name}_m1")
    G.body("M1", f"L_{name}_m1")
    G.body("M1L")
    k(f"s_lshl_b32 s{S_T}, s{S_P}, 2")
    k(f"s_sub_u32 s{S_CNT}, 28, s{S_T}")
    k(f"s_cmp_eq_u32 s{S_CNT}, 0")
    k(f"s_cbranch_scc1 L_{name}_m2")
    k.label(f"L_{name}_n2")
    G.body("N2", f"L_{name}_n2")
    k.label(f"L_{name}_m2")
    G.body("M2")
    G.body("M2L")
    C, B, A_ = TL["c"], TL["b"], TL["a"]
    t = V_T
    pre = [f"s_lshr_b32 s{S_T}, s{S_W}, 1",
           f"s_add_u32 s{S_T}, s{S_T}, 1",
           f"s_lshl_b32 s{S_T}, s{S_T}, 15",
           f"v_add_u32 v{V_RK}, s{S_T}, v{V_RV}",
           f"v_and_b32 v{V_RK}, 0x1ffff, v{V_RK}",
           f"v_xor_b32 v{V_RV}, 0x4000, v{V_RK}",
           f"s_lshl_b32 s{S_T+3}, s{S_W}, 9",
           f"s_add_u32 s{S_T+3}, s{S_T+3}, 0x20000",
           f"s_xor_b32 s{S_T+4}, s{S_T+3}, 512",
           f"v_lshrrev_b32 v{t+3}, 1, v{V_L16}",
           f"v_add_u32 v{t+4}, s{S_T+4}, v{t+3}",
           f"v_add_u32 v{t+3}, s{S_T+3}, v{t+3}",
           f"v_cmp_gt_f32 vcc, 0, v{C.THR}",
           f"v_sub_f32 v{t}, 0, v{C.NM}",
           f"v_mov_b32 v{t+2}, 0xff7fffff",
           f"v_cndmask_b32 v{t}, v{t}, v{t+2}, vcc",
           f"v_mov_b32 v{t+1}, v{C.L}"]
    G.emit(pre)
    wr = [f"ds_write_b128 v{V_RK}, {v(C.O[1]+4*i,4)} offset:{i*1024}" for i in range(16)] + [f"ds_write_b64 v{t+3}, {v(t,2)}"]
    G.emit(merge2(pv("b"), [(wr, 0, 8)]))
    k("s_waitcnt lgkmcnt(0)")
    k("s_barrier")
    O2 = C.O[1]
    k(f"ds_read_b64 {v(t,2)}, v{t+4}")
    for i in range(16):
        k(f"ds_read_b128 {v(O2+4*i,4)}, v{V_RV} offset:{i*1024}")
    G.emit(G.halfsum(A_.L, t+5))
    k(f"v_rcp_f32 v{V_SUM}, v{A_.L}")
    k("s_nop 0")
    def fin(x, sbase, sc, o2=None, sc2=None):
        for dt in range(4):
            for e in range(2):
                tt = 32 + ((2*dt+e) % 4) * 12
                b = 16*dt + 8*e
                for r in range(8): k(f"v_accvgpr_read_b32 v{tt+r}, a{TL[x].O[1]+b+r}")
                for r in range(8): k(f"v_mul_f32 v{tt+r}, v{tt+r}, v{sc}")
                if o2 is not None:
                    for r in range(8): k(f"v_fmac_f32 v{tt+r}, v{o2+b+r}, v{sc2}")
                for r in range(4): k(f"v_cvt_pk_bf16_f32 v{tt+8+r}, v{tt+2*r}, v{tt+2*r+1}")
                k(f"buffer_store_dwordx4 {v(tt+8,4)}, v{V_ST}, {s(S_WS,4)}, s{sbase} offen offset:{dt*1024+e*512}{os.environ.get('K2_STMOD','')}")
    fin("a", S_STA, V_SUM)
    k("s_waitcnt lgkmcnt(0)")
    k(f"v_sub_f32 v{t+2}, 0, v{B.NM}")
    k(f"v_max_f32 v{t+3}, v{t+2}, v{t}")
    k(f"v_sub_f32 v{t+2}, v{t+2}, v{t+3}")
    k(f"v_sub_f32 v{t}, v{t}, v{t+3}")
    k(f"v_exp_f32 v{t+2}, v{t+2}")
    k(f"v_exp_f32 v{t}, v{t}")
    k("s_nop 0")
    k(f"v_mul_f32 v{t+4}, v{B.L}, v{t+2}")
    k(f"v_fmac_f32 v{t+4}, v{t+1}, v{t}")
    G.emit(G.halfsum(t+4, t+5))
    k(f"v_rcp_f32 v{t+4}, v{t+4}")
    k("s_nop 0")
    k(f"v_mul_f32 v{V_SUM}, v{t+2}, v{t+4}")
    k(f"v_mul_f32 v{V_SUM2}, v{t}, v{t+4}")
    fin("b", S_STB, V_SUM, O2, V_SUM2)
    k("s_waitcnt vmcnt(0)") if os.environ.get("PROF") else None
    k.stamp()
    k.prof_flush(S_WS, 2, S_W, 0)
    k.label(E)
    k("s_endpgm")
    G.tramps()
    for x in "abc": G.slow(x)
    return k, 512, 256, 96, f"; @launch kernel={name}_kernel grid=(256,1,1) block=(256,1,1) lds={131072+2048}"
if __name__ == "__main__":
    import hz
    k = gen_k2()[0]
    d = {"L_attn_n1": [True], "L_attn_m1": [True, True], "L_attn_n2": [True, True]}
    hz.check(hz.trace(k.L, dict(d)), "k2")
    for i in range(1, 13): d[f"L_attn_s{i}"] = [True, False, True]
    hz.check(hz.trace(k.L, dict(d)), "k2-slow")
    for x in "abc": d[f"L_attn_slow_{x}_n"] = [True]*20
    hz.check(hz.trace(k.L, dict(d)), "k2-slow-fresh")
    hz.check(hz.trace(k.L, {"L_attn_m1pre": [True], "L_attn_m1": [True, True], "L_attn_m2": [True]}), "k2-short")
```

```python
from ag import *
from layout import *
import os
NT = os.environ.get("K3_NT", "")
NTT = os.environ.get("K3_NTT", "")
R = 8
V_TR = 2
V_DMA = 6
V_TOK = 8
V_X = 12
V_W = 16
V_ACC = 48
V_T = 112
S_WS, S_WO, S_WD, S_PF, S_OUT, S_X = 8, 12, 16, 20, 24, 28
S_W, S_C, S_LB, S_TB, S_COL = 32, 33, 34, 35, 36
S_T = 40
S_K1, S_K2 = 48, 49
S_TCH = 50
V_TCH = 7
TDIST = int(os.environ.get("K3_TD", "0"))
OOB = 0x7ff00000
def accr(mt, T): return V_ACC + (mt*4 + T)*4

def prefetch(slot):
    L = []
    L.append([f"s_cmp_lt_u32 s{S_C}, 128",
              f"s_cselect_b32 s{S_PF}, s{S_WO}, s{S_WD}",
              f"s_cselect_b32 s{S_PF+1}, s{S_WO+1}, s{S_WD+1}",
              f"s_cselect_b32 s{S_PF+2}, s{S_WO+2}, s{S_WD+2}",
              f"s_cselect_b32 s{S_K1}, {15*1024}, s{S_T+4}",
              f"s_cselect_b32 s{S_K2}, {6*1024}, s{S_T+5}",
              f"s_and_b32 s{S_T}, s{S_C}, 127",
              f"s_lshl_b32 s{S_T}, s{S_T}, 15",
              f"s_add_u32 s{S_T}, s{S_T}, s{S_COL}",
              f"s_lshl_b32 s{S_T+1}, s{S_C}, 10",
              f"s_add_u32 s{S_T+1}, s{S_T+1}, s{S_TB}",
              f"s_cmp_lt_u32 s{S_C}, {KS3}",
              f"s_cselect_b32 s{S_T}, s{S_T}, {OOB:#x}",
              f"s_cselect_b32 s{S_T+1}, s{S_T+1}, {OOB:#x}",
              f"s_add_u32 m0, s{S_LB}, {slot*4096}",] + ([f"s_mov_b32 s{S_T}, {OOB:#x}"] if os.environ.get("K3_NOW") else []) + ([f"s_mov_b32 s{S_T+1}, {OOB:#x}"] if os.environ.get("K3_NOTOK") else []) + [
              f"s_add_u32 s{S_C}, s{S_C}, 4"])
    for i in range(4):
        pre = []
        if i == 0: so = f"s{S_T}"
        else:
            src = {1: f"s{S_K1}", 2: f"s{S_K2}", 3: f"{21*1024}"}[i]
            pre = [f"s_add_u32 s{S_T+2}, s{S_T}, {src}"]; so = f"s{S_T+2}"
        L.append(pre + [f"buffer_load_dwordx4 v{V_DMA}, {s(S_PF,4)}, {so} offen offset:{1024*i}{NT} lds"])
    for T in range(4):
        L.append(f"buffer_load_dwordx4 {v(V_T + slot*16 + T*4, 4)}, v{V_TOK+T}, {s(S_WS,4)}, s{S_T+1} offen{NTT}")
    return L
def tr_reads(slot, buf):
    return [f"ds_read_b64_tr_b16 {v(V_W + buf*16 + mt*4 + j*2, 2)}, v{V_TR+mt} offset:{slot*4096 + j*2048}" for mt in range(4) for j in range(2)]

def gen_k3(name="outp"):
    k = K(name + "_kernel")
    E = f"L_{name}_end"
    k("s_cmp_ge_u32 s2, 256")
    k(f"s_cbranch_scc1 {E}")
    k("s_load_dwordx2 s[64:65], s[0:1], 0")
    k("s_load_dwordx2 s[66:67], s[0:1], 40")
    k("s_load_dwordx4 s[68:71], s[0:1], 72")
    k("s_load_dwordx2 s[72:73], s[0:1], 96")
    k.prof_init(240, 90)
    k.stamp()
    k("v_lshrrev_b32 v1, 6, v0")
    k("v_and_b32 v0, 63, v0")
    k(f"v_readfirstlane_b32 s{S_W}, v1")
    k("v_lshrrev_b32 v15, 5, v0")
    k("v_bfe_u32 v16, v0, 2, 3")
    k("v_and_b32 v17, 3, v0")
    k("v_lshlrev_b32 v18, 10, v15")
    k("v_lshl_add_u32 v18, v16, 7, v18")
    k("v_lshl_add_u32 v18, v17, 3, v18")
    k("v_lshrrev_b32 v19, 1, v16")
    k("v_lshl_add_u32 v18, v19, 5, v18")
    k("v_lshl_add_u32 v18, v1, 15, v18")
    for mt in range(4):
        k(f"v_xor_b32 v{V_TR+mt}, {mt*32}, v18")
    k("v_lshrrev_b32 v15, 3, v0")
    k("v_and_b32 v16, 7, v0")
    k("v_and_b32 v17, 6, v15")
    k("v_xor_b32 v16, v16, v17")
    k(f"v_lshlrev_b32 v{V_DMA}, 10, v15")
    k(f"v_lshl_add_u32 v{V_DMA}, v16, 4, v{V_DMA}")
    k(f"v_lshlrev_b32 v{V_TOK}, 4, v0")
    for T in range(1, 4):
        k(f"v_add_u32 v{V_TOK+T}, {T*KS3*1024}, v{V_TOK}")
    k("s_bfe_u32 s3, s2, 0x20001")
    k("s_lshl_b32 s3, s3, 3")
    k("s_bfe_u32 s5, s2, 0x30003")
    k("s_add_u32 s3, s3, s5")
    k("s_and_b32 s4, s2, 1")
    k("s_lshl_b32 s4, s4, 2")
    k("s_lshr_b32 s5, s2, 6")
    k("s_add_u32 s4, s4, s5")
    k(f"s_lshl_b32 s{S_COL}, s4, 7")
    k(f"s_mul_i32 s{S_TB}, s3, {4*KS3*1024}")
    k(f"s_add_u32 s{S_TB}, s{S_TB}, {AF_OFF}")
    k(f"s_lshl_b32 s{S_LB}, s{S_W}, 15")
    k(f"s_mov_b32 s{S_C}, s{S_W}")
    k(f"s_mov_b32 s{S_T+4}, {7*1024}")
    k(f"s_mov_b32 s{S_T+5}, {14*1024}")
    k("s_waitcnt lgkmcnt(0)")
    k.srd(S_WS, 72, WS_USED)
    k.srd(S_WO, 66, H*D*M*2)
    k.srd(S_WD, 68, F*M*2)
    k.srd(S_PF, 66, H*D*M*2)
    k.srd(S_OUT, 70, S*M*2)
    k.srd(S_X, 64, S*M*2)
    def emit(items):
        for it in items:
            if isinstance(it, list):
                for l in it: k(l)
            else: k(it)
    k("s_lshr_b32 s5, s2, 6")
    k(f"s_mul_i32 s{S_TCH}, s5, {KS3*1024}")
    k(f"s_add_u32 s{S_TCH}, s{S_TCH}, s{S_TB}")
    k(f"s_lshl_b32 s5, s{S_W}, 13")
    k(f"s_add_u32 s{S_TCH}, s{S_TCH}, s5")
    k(f"s_add_u32 s{S_TCH}, s{S_TCH}, 32768")
    k(f"v_lshlrev_b32 v{V_TCH}, 7, v0")
    def tch():
        return [f"buffer_load_dword v252, v{V_TCH}, {s(S_WS,4)}, s{S_TCH} offen", f"s_add_u32 s{S_TCH}, s{S_TCH}, 32768"]
    for st in range(R-1):
        emit(prefetch(st))
        if TDIST and st in (2, 4, 6)[:TDIST]: emit(tch())
    k("v_and_b32 v15, 15, v0")
    k("v_lshrrev_b32 v16, 4, v0")
    k(f"v_lshlrev_b32 v{V_X}, 10, v15")
    k(f"v_lshl_add_u32 v{V_X}, v16, 5, v{V_X}")
    k("s_lshl_b32 s5, s3, 16")
    k(f"s_lshl_b32 s6, s{S_W}, 14")
    k("s_add_u32 s5, s5, s6")
    k(f"s_add_u32 s5, s5, s{S_COL}")
    k(f"buffer_load_dwordx4 v[244:247], v{V_X}, {s(S_X,4)}, s5 offen nt")
    k(f"buffer_load_dwordx4 v[248:251], v{V_X}, {s(S_X,4)}, s5 offen offset:16 nt")
    for i in range(64):
        k(f"v_mov_b32 v{V_ACC+i}, 0")
    k(f"s_waitcnt vmcnt({8*(R-2)+2})")
    emit(tr_reads(0, 0))
    k(f"s_mov_b32 s6, 43")
    k.label(f"L_{name}_loop")
    for st in range(R):
        buf = st % 2
        k(f"s_waitcnt vmcnt({8*(R-3)}) lgkmcnt(0)")
        mf = [f"v_mfma_f32_16x16x32_bf16 {v(accr(mt,T),4)}, {v(V_W+buf*16+mt*4,4)}, {v(V_T+st*16+T*4,4)}, {v(accr(mt,T),4)}" for mt in range(4) for T in range(4)]
        streams = [(tr_reads((st+1) % R, 1-buf), 0, 8), (prefetch((st+R-1) % R), 0, 16)]
        if st == 0 and TDIST: streams.append(([tch()], 15, 16))
        for l in merge(mf, streams): k(l)
        if st == R-1: k.stamp()
        k("s_sub_u32 s6, s6, 1")
        k("s_cmp_eq_u32 s6, 0")
        if st < R-1: k(f"s_cbranch_scc1 L_{name}_fin")
        else: k(f"s_cbranch_scc0 L_{name}_loop")
    k.label(f"L_{name}_fin")
    k("s_waitcnt vmcnt(0) lgkmcnt(0)")
    k(f"v_lshlrev_b32 v14, 4, v0")
    k(f"v_add_u32 v14, s{S_LB}, v14")
    k("s_nop 4")
    for t in range(16):
        k(f"ds_write_b128 v14, {v(V_ACC+t*4,4)} offset:{t*1024}")
    k("s_waitcnt lgkmcnt(0)")
    k("s_barrier")
    k("v_and_b32 v15, 15, v0")
    k("v_lshrrev_b32 v13, 4, v0")
    k("v_lshlrev_b32 v14, 12, v13")
    k("v_lshl_add_u32 v14, v15, 4, v14")
    k(f"s_lshl_b32 s7, s{S_W}, 10")
    k("v_add_u32 v14, s7, v14")
    k("v_add_u32 v13, 0x10000, v14")
    for ws_ in range(4):
        for g in range(4):
            ad = "v14" if ws_ < 2 else "v13"
            k(f"ds_read_b128 {v(V_T + ws_*16 + g*4, 4)}, {ad} offset:{(ws_%2)*32768 + g*256}")
        if ws_ == 1: k("s_waitcnt lgkmcnt(4)")
    k("s_waitcnt vmcnt(0) lgkmcnt(0)")
    for i in range(16):
        k(f"v_add_f32 v{V_T+i}, v{V_T+i}, v{V_T+16+i}")
        k(f"v_add_f32 v{V_T+32+i}, v{V_T+32+i}, v{V_T+48+i}")
    for i in range(8):
        k(f"v_lshlrev_b32 v{V_T+16+2*i}, 16, v{244+i}")
        k(f"v_and_b32 v{V_T+16+2*i+1}, 0xffff0000, v{244+i}")
    for i in range(16):
        k(f"v_add_f32 v{V_T+i}, v{V_T+i}, v{V_T+32+i}")
        k(f"v_add_f32 v{V_T+i}, v{V_T+i}, v{V_T+16+i}")
    for i in range(8):
        k(f"v_cvt_pk_bf16_f32 v{24+i}, v{V_T+2*i}, v{V_T+2*i+1}")
    k(f"buffer_store_dwordx4 v[24:27], v{V_X}, {s(S_OUT,4)}, s5 offen")
    k(f"buffer_store_dwordx4 v[28:31], v{V_X}, {s(S_OUT,4)}, s5 offen offset:16")
    if os.environ.get("PROF"): k("s_waitcnt vmcnt(0)")
    k.stamp()
    k.prof_flush(S_WS, 3, S_W, 0)
    k.label(E)
    k("s_endpgm")
    return k, 256, 256, 96, f"; @launch kernel={name}_kernel grid=(256,1,1) block=(256,1,1) lds=131072"
if __name__ == "__main__":
    import hz
    k = gen_k3()[0]
    hz.check(hz.trace(k.L, {"L_outp_loop": [True], "L_outp_fin": [False]*7 + [False]*2 + [True]}), "k3")
```
